```python
import torch

def _softmax(x, axis=-1):
    return torch.softmax(x, dim=axis)
def _gelu(x):
    return torch.nn.functional.gelu(x, approximate="tanh")
def _silu(x):
    return torch.nn.functional.silu(x)
def _sigmoid(x):
    return torch.sigmoid(x)
def _layernorm(x, axis=-1, eps=1e-5):
    m = x.mean(dim=axis, keepdim=True)
    v = x.var(dim=axis, keepdim=True, unbiased=False)
    return (x - m) / torch.sqrt(v + eps)
def _scatter_add(tgt, idx, src, axis=0):
    return tgt.clone().index_add_(axis, idx, src)
def _segment_sum(src, seg, n):
    out = torch.zeros((n,) + src.shape[1:], dtype=src.dtype)
    return out.index_add_(0, seg, src)
def _pad(x, pw):
    flat = tuple(v for pair in reversed(pw) for v in pair)
    return torch.nn.functional.pad(x, flat)

kernel_name = 'standalone__kv_cache_quant_int4_int2_kv_with_per_channel_or_per_token_scales__prompt'

def setup_inputs():

    _w = (lambda a: (lambda t: t.to(torch.bfloat16) if t.is_floating_point() else t)(torch.as_tensor(a)))
    B = 1
    Sq = 2048
    Skv = 2048
    Hq = 32
    Hkv = 8
    Dh = 128
    bits = 8
    G = 128
    if G <= 0 or G >= Skv:
        G = max(1, Skv // 2)
    Skv = (Skv // G) * G
    ngk = Skv // G
    qmax = (1 << bits) - 1
    return {
        "q": _w((lambda *s: torch.randn(*s, dtype=torch.bfloat16) * 0.2)(B, Hq, Sq, Dh)),
        "qk": _w(torch.randint(0, qmax + 1, (B, Hkv, Skv, Dh)).to(torch.int32)),
        "qv": _w(torch.randint(0, qmax + 1, (B, Hkv, Skv, Dh)).to(torch.int32)),
        "k_scales": _w(torch.abs((lambda *s: torch.randn(*s, dtype=torch.bfloat16) * 0.2)(B, Hkv, ngk, Dh)) * 0.05 + 0.02),
        "k_zeros": _w((lambda *s: torch.randn(*s, dtype=torch.bfloat16) * 0.2)(B, Hkv, ngk, Dh) + float(qmax) / 2.0),
        "v_scales": _w(torch.abs((lambda *s: torch.randn(*s, dtype=torch.bfloat16) * 0.05)(B, Hkv, Skv, 1)) * 0.05 + 0.02),
        "v_zeros": _w((lambda *s: torch.randn(*s, dtype=torch.bfloat16) * 0.05)(B, Hkv, Skv, 1) + float(qmax) / 2.0),
    }

def reference(q, qk, qv, k_scales, k_zeros, v_scales, v_zeros):
    B, Hq, Sq, Dh = q.shape
    Hkv, Skv = qk.shape[1], qk.shape[2]
    ngk = k_scales.shape[2]
    G = Skv // ngk
    ks = (lambda x, n, axis: torch.repeat_interleave(x, n, dim=axis))(k_scales, G, axis=2)
    kz = (lambda x, n, axis: torch.repeat_interleave(x, n, dim=axis))(k_zeros, G, axis=2)
    k = ((lambda x, dt: x.to(dt))(qk, q.dtype) - kz) * ks
    v = ((lambda x, dt: x.to(dt))(qv, q.dtype) - v_zeros) * v_scales
    rep = Hq // Hkv
    if rep > 1:
        k = (lambda x, n, axis: torch.repeat_interleave(x, n, dim=axis))(k, rep, axis=1)
        v = (lambda x, n, axis: torch.repeat_interleave(x, n, dim=axis))(v, rep, axis=1)
    scale = float(Dh) ** -0.5
    logits = torch.einsum("bhqd,bhkd->bhqk", q, k) * scale
    p = _softmax(logits, axis=-1)
    o = torch.einsum("bhqk,bhkd->bhqd", p, v)
    return o
```

```python
import re

REG_RE = re.compile(r'\b([vas])(\d+)\b|\b([vas])\[(\d+):(\d+)\]|\b(vcc|exec|m0|scc)\b')

def regs_of(tok):
    out = []
    for m in REG_RE.finditer(tok):
        if m.group(1): out.append(m.group(1) + m.group(2))
        elif m.group(3): out += [m.group(3) + str(i) for i in range(int(m.group(4)), int(m.group(5)) + 1)]
        else: out.append(m.group(6))
    return out

TRANS = ('v_exp_f32', 'v_log_f32', 'v_rcp_f32', 'v_rsq_f32', 'v_sqrt_f32')

class Ins:
    def __init__(self, text):
        self.text = text
        t = text.split(';')[0].strip()
        self.label = t.endswith(':')
        self.directive = t.startswith('.')
        self.op = t.split()[0] if t else ''
        self.reads = set(); self.writes = set(); self.kind = 'other'
        self.A = self.B = self.C = self.D = None
        if self.label or self.directive or not t: self.kind = 'meta'; return
        rest = t[len(self.op):].strip()
        ops = [x.strip() for x in rest.split(',')] if rest else []
        op = self.op
        R = lambda i: regs_of(ops[i])
        if op.startswith('v_mfma') or op.startswith('v_smfmac'):
            self.kind = 'mfma'
            self.D = R(0); self.A = R(1); self.B = R(2); self.C = R(3)
            self.writes = set(self.D); self.reads = set(self.A + self.B + self.C)
            if op.startswith('v_smfmac'):
                self.A = self.A + self.C; self.C = self.D; self.reads |= set(self.D)
            self.passes = 8 if '32x32' in op else 4
        elif op.startswith('v_cmp'):
            self.kind = 'valu'; self.writes = set(R(0)); self.reads = set(sum((R(i) for i in range(1, len(ops))), []))
        elif op.startswith('v_permlane'):
            self.kind = 'valu'; self.writes = set(R(0) + R(1)); self.reads = set(R(0) + R(1))
        elif op.startswith('v_'):
            self.kind = 'trans' if op.replace('_e32', '').replace('_e64', '') in TRANS else 'valu'
            self.writes = set(R(0)); self.reads = set(sum((R(i) for i in range(1, len(ops))), []))
            if op.startswith('v_fmac') or op.startswith('v_dot2c'): self.reads |= self.writes
            if op.startswith('v_cndmask') and len(ops) == 3: self.reads.add('vcc')
        elif op.startswith('ds_read'):
            self.kind = 'ds'; self.writes = set(R(0)); self.reads = set(R(1))
        elif op.startswith('ds_'):
            self.kind = 'ds'; self.reads = set(sum((R(i) for i in range(len(ops))), []))
        elif op.startswith('buffer_load') or op.startswith('global_load'):
            self.kind = 'vmem'
            if ' lds' in t:
                self.reads = set(sum((R(i) for i in range(len(ops))), [])); self.reads.add('m0'); self.lds = True
            else:
                self.writes = set(R(0)); self.reads = set(sum((R(i) for i in range(1, len(ops))), []))
        elif op.startswith('buffer_store') or op.startswith('global_store') or op.startswith('buffer_atomic') or op.startswith('global_atomic'):
            self.kind = 'vmem'; self.reads = set(sum((R(i) for i in range(len(ops))), []))
            self.store_data = set(R(0)) if op.startswith('buffer') else set(R(1))
            self.wide = op.endswith('x4') or op.endswith('x3')
        elif op == 's_nop':
            self.kind = 'nop'; self.n = int(ops[0], 0) + 1
        elif op.startswith('s_'):
            self.kind = 'salu'
            if op.startswith('s_cmp') or op.startswith('s_cbranch') or op in ('s_waitcnt', 's_barrier', 's_branch', 's_endpgm', 's_setprio', 's_sleep'):
                self.reads = set(sum((R(i) for i in range(len(ops))), []))
            else:
                self.writes = set(R(0)); self.reads = set(sum((R(i) for i in range(1, len(ops))), []))
    def states(self):
        if self.kind == 'meta': return 0
        if self.kind == 'nop': return self.n
        return 1

def need(p, c):
    n = 0
    pv = p.kind in ('valu', 'trans'); cv = c.kind in ('valu', 'trans')
    vw = {r for r in p.writes if r[0] in 'va' and r not in ('vcc',)}
    if pv and c.kind == 'mfma' and (vw & c.reads): n = max(n, 2)
    if p.kind == 'mfma':
        D = set(p.D); big = p.passes == 8
        if c.kind == 'mfma':
            if D & (set(c.A) | set(c.B)): n = max(n, 12 if big else 8)
            if D & set(c.C) and not (c.C == p.D and c.passes == p.passes): n = max(n, 10 if big else 6)
            if D & set(c.D) and not (D & set(c.C)): n = max(n, 0)
        elif cv:
            if D & (c.reads | c.writes): n = max(n, 12 if big else 8)
            if set(p.C) & c.writes: n = max(n, 7 if big else 3)
        elif c.kind in ('ds', 'vmem'):
            if D & (c.reads | c.writes): n = max(n, 12 if big else 8)
    if p.kind == 'trans' and c.kind == 'valu' and (vw & c.reads): n = max(n, 1)
    if pv and c.op.startswith('v_permlane') and (vw & c.reads): n = max(n, 2)
    if pv and (c.op.startswith('v_readfirstlane') or c.op.startswith('v_readlane')) and (vw & c.reads): n = max(n, 1)
    if pv and 'dpp' in c.text and (vw & c.reads): n = max(n, 2)
    sw = {r for r in p.writes if r[0] == 's' or r == 'vcc'}
    if pv and sw:
        if cv and (sw & c.reads): n = max(n, 2)
        if c.kind == 'vmem' and (sw & c.reads): n = max(n, 5)
        if c.kind == 'salu' and (sw & c.reads): n = max(n, 1)
    if p.kind == 'salu' and 'm0' in p.writes and c.kind == 'vmem' and 'm0' in c.reads: n = max(n, 1)
    if p.kind == 'vmem' and getattr(p, 'wide', False) and (p.store_data & c.writes): n = max(n, 2)
    return n

def fix_hazards(lines, insert=True, ctx=None, name=''):
    hist = [Ins(x) for x in (ctx or [])]
    out = []
    for text in lines:
        c = Ins(text)
        if c.kind != 'meta':
            dist = 0; req = 0
            for p in reversed(hist):
                if dist >= 20: break
                if p.kind != 'meta':
                    w = need(p, c)
                    if w > dist: req = max(req, w - dist)
                dist += p.states()
            if req > 0:
                if not insert:
                    raise Exception(f"hazard in {name}: need {req} more states before: {text}")
                while req > 0:
                    k = min(req, 16)
                    nop = f"s_nop {k-1}"
                    out.append(nop); hist.append(Ins(nop)); req -= k
        out.append(text); hist.append(c)
    return out
```

```python
import sys, struct
from asmlib import fix_hazards, Ins

NAME = "standalone__kv_cache_quant_int4_int2_kv_with_per_channel_or_per_token_scales__prompt"
KMAIN = NAME + "_kernel"
CSCALE = 1.4426950408889634 / (128 ** 0.5)
def f2u(x): return struct.unpack('<I', struct.pack('<f', x))[0]

def vr(x, n=4): return f"v[{x}:{x+n-1}]"
def ar(x, n=4): return f"a[{x}:{x+n-1}]"
def m16(d, A, B, c): return f"v_mfma_f32_16x16x32_bf16 {vr(d)}, {A}, {B}, {c}"

def srd(L, d, lo, hi, size):
    L += [f"s_mov_b32 s{d}, s{lo}", f"s_mov_b32 s{d+1}, s{hi}", f"s_mov_b32 s{d+2}, {size:#x}", f"s_mov_b32 s{d+3}, 0x20000"]

def unpack(L, dst, src, n):
    for i in range(n):
        L.append(f"v_lshlrev_b32 v{dst+2*i}, 16, v{src+i}")
        L.append(f"v_and_b32 v{dst+2*i+1}, 0xffff0000, v{src+i}")

def round_pair(L, a, b, t):
    L.append(f"v_cvt_pk_bf16_f32 v{t}, v{a}, v{b}")
    L.append(f"v_lshlrev_b32 v{a}, 16, v{t}")
    L.append(f"v_and_b32 v{b}, 0xffff0000, v{t}")

def prep_kernel():
    L = []
    a = L.append
    a("s_cmp_ge_u32 s2, 512")
    a("s_cbranch_scc1 L_prep_end")
    a("s_load_dwordx4 s[4:7], s[0:1], 8")
    a("s_load_dwordx8 s[8:15], s[0:1], 24")
    a("s_load_dwordx2 s[16:17], s[0:1], 72")
    a("v_lshrrev_b32 v1, 6, v0")
    a("v_and_b32 v0, 63, v0")
    a("v_readfirstlane_b32 s20, v1")
    a("s_and_b32 s18, s2, 7")
    a("s_lshr_b32 s19, s2, 3")
    a("s_lshl_b32 s21, s18, 20")
    a("s_lshl_b32 s22, s19, 14")
    a("s_add_u32 s21, s21, s22")
    a("s_add_u32 s22, s21, 8192")
    a("s_add_u32 s40, s21, 4096")
    a("s_waitcnt lgkmcnt(0)")
    srd(L, 36, 16, 17, 8 << 20)
    a("s_cmp_ge_u32 s20, 2")
    a("s_cbranch_scc1 L_prep_v")
    srd(L, 24, 4, 5, 8 << 20)
    srd(L, 28, 8, 9, 32768)
    srd(L, 32, 10, 11, 32768)
    a("v_and_b32 v5, 15, v0")
    a("v_lshrrev_b32 v6, 4, v0")
    a("v_lshlrev_b32 v2, 9, v5")
    a("v_lshl_add_u32 v2, v6, 5, v2")
    a("s_lshl_b32 s23, s20, 7")
    a("v_add_u32 v2, s23, v2")
    for u in range(4):
        so = "s21" if u < 2 else "s22"
        for hh in range(2):
            a(f"buffer_load_dwordx4 {vr(8+8*u+4*hh)}, v2, s[24:27], {so} offen offset:{(u%2)*256+hh*16}")
    a("s_lshl_b32 s23, s20, 6")
    a("v_lshlrev_b32 v3, 4, v6")
    a("v_add_u32 v3, s23, v3")
    a("s_lshl_b32 s23, s18, 12")
    a("s_lshr_b32 s41, s19, 2")
    a("s_lshl_b32 s41, s41, 8")
    a("s_add_u32 s23, s23, s41")
    a(f"buffer_load_dwordx4 {vr(40)}, v3, s[28:31], s23 offen")
    a(f"buffer_load_dwordx4 {vr(44)}, v3, s[28:31], s23 offen offset:128")
    a(f"buffer_load_dwordx4 {vr(48)}, v3, s[32:35], s23 offen")
    a(f"buffer_load_dwordx4 {vr(52)}, v3, s[32:35], s23 offen offset:128")
    a("s_lshl_b32 s23, s20, 10")
    a("v_lshlrev_b32 v4, 4, v0")
    a("v_add_u32 v4, s23, v4")
    a(f"s_mov_b32 s42, {f2u(CSCALE):#x}")
    a("s_waitcnt vmcnt(0)")
    unpack(L, 64, 40, 16)
    for u in range(4):
        b = 8 + 8*u; sc = 64 + 8*(u % 2); zz = 80 + 8*(u % 2)
        for i in range(8): a(f"v_cvt_f32_i32 v{b+i}, v{b+i}")
        for i in range(0, 8, 2): round_pair(L, b+i, b+i+1, 56 + i//2)
        for i in range(8): a(f"v_sub_f32 v{b+i}, v{b+i}, v{zz+i}")
        for i in range(0, 8, 2): round_pair(L, b+i, b+i+1, 56 + i//2)
        for i in range(8): a(f"v_mul_f32 v{b+i}, v{b+i}, v{sc+i}")
        for i in range(0, 8, 2): round_pair(L, b+i, b+i+1, 56 + i//2)
        for i in range(8): a(f"v_mul_f32 v{b+i}, s42, v{b+i}")
        for i in range(0, 8, 2): a(f"v_cvt_pk_bf16_f32 v{96+4*u+i//2}, v{b+i}, v{b+i+1}")
        so = "s21" if u < 2 else "s40"
        a(f"buffer_store_dwordx4 {vr(96+4*u)}, v4, s[36:39], {so} offen offset:{(u%2)*2048}")
    a("s_endpgm")
    a("L_prep_v:")
    srd(L, 24, 6, 7, 8 << 20)
    srd(L, 28, 12, 13, 32768)
    srd(L, 32, 14, 15, 32768)
    a("v_and_b32 v5, 31, v0")
    a("v_lshrrev_b32 v6, 5, v0")
    a("s_sub_u32 s23, s20, 2")
    a("s_lshl_b32 s23, s23, 1")
    a("v_add_u32 v6, s23, v6")
    a("v_lshlrev_b32 v2, 11, v6")
    a("v_lshl_add_u32 v2, v5, 4, v2")
    for i in range(8):
        so = "s21" if i < 4 else "s22"
        a(f"buffer_load_dwordx4 {vr(8+4*i)}, v2, s[24:27], {so} offen offset:{(i%4)*512}")
    a("v_lshlrev_b32 v3, 3, v6")
    a("s_lshl_b32 s23, s18, 12")
    a("s_lshl_b32 s41, s19, 6")
    a("s_add_u32 s23, s23, s41")
    a(f"buffer_load_dwordx2 {vr(40,2)}, v3, s[28:31], s23 offen")
    a(f"buffer_load_dwordx2 {vr(42,2)}, v3, s[28:31], s23 offen offset:32")
    a(f"buffer_load_dwordx2 {vr(44,2)}, v3, s[32:35], s23 offen")
    a(f"buffer_load_dwordx2 {vr(46,2)}, v3, s[32:35], s23 offen offset:32")
    a("v_lshrrev_b32 v7, 3, v5")
    a("v_lshlrev_b32 v4, 11, v7")
    a("v_and_b32 v7, 1, v5")
    a("v_lshl_add_u32 v4, v7, 10, v4")
    a("v_lshl_add_u32 v4, v6, 8, v4")
    a("v_bfe_u32 v7, v5, 1, 2")
    a("v_lshl_add_u32 v4, v7, 6, v4")
    a("s_waitcnt vmcnt(0)")
    unpack(L, 64, 40, 8)
    for i in range(32): a(f"v_cvt_f32_i32 v{8+i}, v{8+i}")
    for rr in range(4):
        e = lambda i: 8 + 4*i + rr
        for i in range(0, 8, 2): round_pair(L, e(i), e(i+1), 56 + i//2)
        for i in range(8): a(f"v_sub_f32 v{e(i)}, v{e(i)}, v{72+i}")
        for i in range(0, 8, 2): round_pair(L, e(i), e(i+1), 56 + i//2)
        for i in range(8): a(f"v_mul_f32 v{e(i)}, v{e(i)}, v{64+i}")
        for i in range(0, 8, 2): a(f"v_cvt_pk_bf16_f32 v{96+4*rr+i//2}, v{e(i)}, v{e(i+1)}")
        a(f"buffer_store_dwordx4 {vr(96+4*rr)}, v4, s[36:39], s22 offen offset:{rr*16}")
    a("L_prep_end:")
    a("s_endpgm")
    return fix_hazards(L)

def S16(buf, qt, r=0): return 64 + buf*32 + qt*8 + r
def NEGM(qt): return 32 + qt*4
def LS(qt): return 48 + qt*4
def OT(qt, dt): return 128 + (qt*8 + dt)*4
def QF(qt, ks): return (qt*4 + ks)*4
def FR(f): return 64 + f*4
ONES = 128

def smax_reduce(L, regs, op):
    for k, r in enumerate(regs): L.append(f"v_mov_b32 v{24+k}, v{r}")
    for k, r in enumerate(regs): L.append(f"v_permlane32_swap_b32 v{r}, v{24+k}")
    for k, r in enumerate(regs): L.append(f"{op} v{r}, v{r}, v{24+k}")
    for k, r in enumerate(regs): L.append(f"v_mov_b32 v{24+k}, v{r}")
    for k, r in enumerate(regs): L.append(f"v_permlane16_swap_b32 v{r}, v{24+k}")
    for k, r in enumerate(regs): L.append(f"{op} v{r}, v{r}, v{24+k}")

def step_gaps(par, mode, opt):
    nb = (par + 1) % 2; cb = par
    msum = opt.get('msum', 0)
    D = opt.get('delta', 12)
    gaps = [[None] for _ in range(64)]
    i = 0
    for kt in range(2):
        for ks in range(4):
            for qt in range(4):
                d = S16(nb, qt, kt*4)
                c = vr(d) if ks else ("0" if mode == 'first' else vr(NEGM(qt)))
                if mode != 'last': gaps[i][0] = m16(d, ar(FR(kt*4+ks)), ar(QF(qt, ks)), c)
                i += 1
    for dt in range(8):
        for qt in range(4):
            d = OT(qt, dt)
            if mode != 'first': gaps[i][0] = m16(d, ar(FR(8+dt)), vr(S16(cb, qt)), vr(d))
            i += 1
    def elem(e, buf):
        kt = e // 16; qt = (e % 16)//4; r = e % 4
        return S16(buf, qt, kt*4 + r), qt, kt, r
    def at(t):
        e = t - D
        if e >= 0: return e, nb, mode != 'last'
        return e + 32, cb, mode != 'first'
    for t in range(32):
        e, b, ok = at(t); r, qt, kt, rr = elem(e, b)
        if ok:
            gaps[2*t].append(f"v_exp_f32 v{r}, v{r}")
            if not msum: gaps[2*t+1].append(f"v_add_f32 v{12+qt}, v{12+qt}, v{r}")
        e, b, ok = at(t-1)
        if e % 2 == 1 and ok:
            r, qt, kt, rr = elem(e, b)
            gaps[2*t+1].append(f"v_cvt_pk_bf16_f32 v{S16(b, qt, kt*2 + rr//2)}, v{r-1}, v{r}")
    for f0 in range(16):
        t = 2*f0 + (1 if D % 2 == 0 else 0)
        f = (f0 + 8) % 16
        if f0 < 8:
            if mode == 'first': continue
            ins = f"ds_read_b128 {ar(FR(f))}, v2 offset:{par*16384 + 8192 + (f-8)*1024}"
        else:
            if mode == 'last': continue
            ins = f"ds_read_b128 {ar(FR(f))}, v3 offset:{par*16384 + f*1024}"
        gaps[2*t+1].insert(1, ins)
    if mode == 'loop':
        for g in range(0, 64, 16): gaps[(g-1) % 64].append("s_waitcnt lgkmcnt(4)")
    elif mode == 'first':
        gaps[63].append("s_waitcnt lgkmcnt(4)")
    else:
        gaps[31].append("s_waitcnt lgkmcnt(4)")
        gaps[47].append("s_waitcnt lgkmcnt(0)")
    if par == 1 and mode != 'last': gaps[41].append("v_mov_b32 v2, v3")
    if par == 0:
        gaps[9].append("v_add_u32 v3, 0x8000, v3")
        gaps[13].append("v_and_b32 v3, 0x1ffff, v3")
    dma = lambda k: f"buffer_load_dwordx4 v1, s[12:15], s23 offen offset:{k*1024} lds"
    if mode == 'loop':
        gaps[4].insert(1, dma(2)); gaps[20].insert(1, dma(3))
        gaps[30].insert(1, "s_add_u32 s22, s22, 0x4000")
        gaps[32].insert(1, "s_and_b32 s23, s22, 0xfffff")
        gaps[34].insert(1, "s_and_b32 m0, s22, 0x1ffff")
        gaps[36].insert(1, dma(0)); gaps[52].insert(1, dma(1))
        if par == 0:
            gaps[22].insert(1, "s_cmp_lt_u32 s24, 29")
            gaps[24].insert(1, "s_cselect_b32 s14, s25, 0")
            gaps[26].insert(1, "s_waitcnt vmcnt(8)")
            gaps[28].insert(1, "s_barrier")
            gaps[60].insert(1, "s_cmp_eq_u32 s24, 31")
        else:
            gaps[60].insert(1, "s_add_u32 s24, s24, 1")
    if msum and mode != 'first':
        for qt in range(4):
            gaps[39 + qt*6].append(m16(LS(qt), ar(ONES), vr(S16(cb, qt)), vr(LS(qt))))
    return gaps

def flat(gaps):
    L = []
    for g in gaps: L += [x for x in g if x is not None]
    return L

def main_kernel(opt):
    msum = opt.get('msum', 0)
    P = []
    a = P.append
    a("s_cmp_ge_u32 s2, 256")
    a("s_cbranch_scc1 L_end")
    a("s_load_dwordx2 s[4:5], s[0:1], 0")
    a("s_load_dwordx2 s[6:7], s[0:1], 56")
    a("s_load_dwordx2 s[26:27], s[0:1], 72")
    a("v_lshrrev_b32 v5, 6, v0")
    a("v_and_b32 v0, 63, v0")
    a("v_readfirstlane_b32 s20, v5")
    a("v_lshlrev_b32 v1, 4, v0")
    a("s_and_b32 s28, s2, 7")
    a("s_lshr_b32 s29, s2, 3")
    a("s_lshl_b32 s22, s29, 15")
    a("s_and_b32 s30, s22, 0x1ffff")
    a("v_add_u32 v3, s30, v1")
    a("s_lshl_b32 s21, s20, 12")
    a("s_add_u32 s22, s22, s21")
    a("s_lshl_b32 s31, s28, 5")
    a("s_add_u32 s31, s31, s29")
    a("s_lshl_b32 s31, s31, 16")
    a("s_lshl_b32 s30, s20, 14")
    a("s_add_u32 s31, s31, s30")
    a("s_add_u32 s32, s31, 4096"); a("s_add_u32 s33, s31, 8192"); a("s_add_u32 s34, s31, 12288")
    a("v_and_b32 v5, 15, v0")
    a("v_lshrrev_b32 v6, 4, v0")
    a("v_lshlrev_b32 v4, 8, v5")
    a("v_lshl_add_u32 v4, v6, 4, v4")
    a("s_lshl_b32 s30, s28, 20")
    a("s_mov_b32 s25, 0x100000")
    a("s_mov_b32 s24, 0")
    a("s_mov_b32 s35, 0")
    a("s_waitcnt lgkmcnt(0)")
    srd(P, 8, 4, 5, 16 << 20)
    srd(P, 16, 6, 7, 16 << 20)
    a("s_add_u32 s12, s26, s30"); a("s_addc_u32 s13, s27, 0"); a("s_mov_b32 s14, 0x100000"); a("s_mov_b32 s15, 0x20000")
    def dma_group(n):
        a("s_and_b32 s23, s22, 0xfffff")
        a("s_and_b32 m0, s22, 0x1ffff")
        a("s_nop 0")
        for k in range(n): a(f"buffer_load_dwordx4 v1, s[12:15], s23 offen offset:{k*1024} lds")
    dma_group(4)
    for qt in range(4):
        for ks in range(4):
            a(f"buffer_load_dwordx4 {ar(QF(qt,ks))}, v4, s[8:11], s{31+qt} offen offset:{ks*64}")
    for st in range(1, 6):
        a("s_add_u32 s22, s22, 0x4000")
        dma_group(4 if st < 5 else 2)
    for i in range(128, 256): a(f"v_mov_b32 v{i}, 0")
    if msum:
        for i in range(48, 64): a(f"v_mov_b32 v{i}, 0")
        a("v_mov_b32 v5, 0x3f803f80")
        for i in range(4): a(f"v_accvgpr_write_b32 a{ONES+i}, v5")
    else:
        for i in range(12, 16): a(f"v_mov_b32 v{i}, 0")
    a("s_waitcnt vmcnt(14)")
    a("s_barrier")
    for f in range(8): a(f"ds_read_b128 {ar(FR(f))}, v3 offset:{f*1024}")
    g = step_gaps(1, 'first', opt)
    for i in range(32):
        if i % 4 == 0: a(f"s_waitcnt lgkmcnt({7 - i//4})")
        a(g[i][0]); g[i][0] = None
    for qt in range(4):
        s = S16(0, qt); m = 16 + qt
        a(f"v_max3_f32 v{m}, v{s}, v{s+1}, v{s+2}")
        a(f"v_max3_f32 v{m}, v{m}, v{s+3}, v{s+4}")
        a(f"v_max3_f32 v{m}, v{m}, v{s+5}, v{s+6}")
        a(f"v_max_f32 v{m}, v{m}, v{s+7}")
    smax_reduce(P, [16, 17, 18, 19], "v_max_f32")
    for qt in range(4):
        for r in range(4): a(f"v_sub_f32 v{NEGM(qt)+r}, 0, v{16+qt}")
        for r in range(8): a(f"v_sub_f32 v{S16(0,qt,r)}, v{S16(0,qt,r)}, v{16+qt}")
    P += flat(g)
    P = fix_hazards(P)
    ev = flat(step_gaps(0, 'loop', opt)) + ["s_cbranch_scc1 L_tail"]
    od = flat(step_gaps(1, 'loop', opt)) + ["s_branch L_loop"]
    fix_hazards(ev + od, insert=False, ctx=P, name='loop-entry')
    fix_hazards(ev + od, insert=False, ctx=ev + od, name='loop-back')
    B = [".p2align 6", "L_loop:"] + ev + od
    T = ["L_tail:"] + flat(step_gaps(1, 'last', opt))
    a = T.append
    a("L_epi:")
    if msum: lr = [LS(qt) for qt in range(4)]
    else:
        lr = [12, 13, 14, 15]
        smax_reduce(T, lr, "v_add_f32")
    a(f"s_mov_b32 s30, {f2u(2.0**40):#x}")
    a(f"v_max3_f32 v16, v{lr[0]}, v{lr[1]}, v{lr[2]}")
    a(f"v_max_f32 v16, v16, v{lr[3]}")
    a(f"v_add_f32 v17, v{lr[0]}, v{lr[1]}")
    a(f"v_add_f32 v18, v{lr[2]}, v{lr[3]}")
    a("v_add_f32 v17, v17, v18")
    a("v_cmp_nlt_f32 vcc, v17, s30")
    a("s_cmp_lg_u32 s35, 0")
    a("s_cbranch_scc1 L_fin")
    a("s_cbranch_vccnz L_slow")
    a("L_fin:")
    for qt in range(4): a(f"v_rcp_f32 v{20+qt}, v{lr[qt]}")
    for qt in range(4):
        for s in range(4):
            o = OT(qt, 2*s)
            for r in range(8): a(f"v_mul_f32 v{o+r}, v{o+r}, v{20+qt}")
            for r in range(0, 8, 2): a(f"v_cvt_pk_bf16_f32 v{o+r//2}, v{o+r}, v{o+r+1}")
            a(f"buffer_store_dwordx4 {vr(o)}, v4, s[16:19], s{31+qt} offen offset:{s*64}")
    a("L_end:")
    a("s_endpgm")
    T = fix_hazards(T, ctx=ev)
    X = ["L_slow:"]
    a = X.append
    a("s_mov_b32 s35, 1")
    a("s_mov_b32 s14, 0x100000")
    a("s_waitcnt vmcnt(0) lgkmcnt(0)")
    for qt in range(4): a(f"v_mov_b32 v{16+qt}, 0xff800000")
    a("s_mov_b32 s36, 0")
    a("L_slow1:")
    a("s_add_u32 s37, s36, 4096")
    for f in range(8): a(f"buffer_load_dwordx4 {ar(FR(f))}, v1, s[12:15], s{36+f//4} offen offset:{(f%4)*1024}")
    a("s_waitcnt vmcnt(0)")
    for kt in range(2):
        for ks in range(4):
            for qt in range(4):
                d = S16(0, qt, kt*4)
                a(m16(d, ar(FR(kt*4+ks)), ar(QF(qt, ks)), vr(d) if ks else "0"))
    a("s_nop 7")
    for qt in range(4):
        s = S16(0, qt); m = 16 + qt
        for r in range(0, 8, 2): a(f"v_max3_f32 v{m}, v{m}, v{s+r}, v{s+r+1}")
    a("s_add_u32 s36, s36, 0x4000")
    a("s_cmp_lt_u32 s36, 0x100000")
    a("s_cbranch_scc1 L_slow1")
    smax_reduce(X, [16, 17, 18, 19], "v_max_f32")
    for qt in range(4):
        for r in range(4): a(f"v_sub_f32 v{NEGM(qt)+r}, 0, v{16+qt}")
    for i in range(128, 256): a(f"v_mov_b32 v{i}, 0")
    for i in (range(48, 64) if msum else range(12, 16)): a(f"v_mov_b32 v{i}, 0")
    a("s_mov_b32 s36, 0")
    a("L_slow2:")
    a("s_add_u32 s37, s36, 4096"); a("s_add_u32 s38, s36, 8192"); a("s_add_u32 s39, s36, 12288")
    for f in range(16): a(f"buffer_load_dwordx4 {ar(FR(f))}, v1, s[12:15], s{36+f//4} offen offset:{(f%4)*1024}")
    a("s_waitcnt vmcnt(0)")
    for kt in range(2):
        for ks in range(4):
            for qt in range(4):
                d = S16(0, qt, kt*4)
                a(m16(d, ar(FR(kt*4+ks)), ar(QF(qt, ks)), vr(d) if ks else vr(NEGM(qt))))
    a("s_nop 7")
    for qt in range(4):
        s = S16(0, qt)
        for r in range(8): a(f"v_exp_f32 v{s+r}, v{s+r}")
        if not msum:
            for r in range(8): a(f"v_add_f32 v{12+qt}, v{12+qt}, v{s+r}")
        for r in range(0, 8, 2): a(f"v_cvt_pk_bf16_f32 v{s+r//2}, v{s+r}, v{s+r+1}")
    for dt in range(8):
        for qt in range(4):
            a(m16(OT(qt, dt), ar(FR(8+dt)), vr(S16(0, qt)), vr(OT(qt, dt))))
    if msum:
        for qt in range(4): a(m16(LS(qt), ar(ONES), vr(S16(0, qt)), vr(LS(qt))))
    a("s_nop 7")
    a("s_add_u32 s36, s36, 0x4000")
    a("s_cmp_lt_u32 s36, 0x100000")
    a("s_cbranch_scc1 L_slow2")
    a("s_branch L_epi")
    X = fix_hazards(X)
    return P + B + T + X

def kd(name, nv, acc, ns=96):
    return f""".p2align 6
.amdhsa_kernel {name}
  .amdhsa_next_free_vgpr {nv}
  .amdhsa_next_free_sgpr {ns}
  .amdhsa_accum_offset {acc}
  .amdhsa_group_segment_fixed_size 0
  .amdhsa_kernarg_size 80
  .amdhsa_user_sgpr_count 2
  .amdhsa_user_sgpr_kernarg_segment_ptr 1
  .amdhsa_system_sgpr_workgroup_id_x 1
  .amdhsa_float_denorm_mode_32 3
.end_amdhsa_kernel
"""

def fmt(L):
    return "\n".join((x if (x.endswith(":") or x.startswith(".")) else "    " + x) for x in L) + "\n"

def generate(opt):
    hdr = open(f"cdna_kernels/{NAME}.s.ref").read().split("; Override launch")[0]
    out = hdr
    out += "; Two launches: prep_kernel dequantises K/V into MFMA-fragment order (bf16) in d_ws, the main kernel is flash attention.\n"
    out += f"; @launch kernel=prep_kernel grid=(512,1,1) block=(256,1,1) lds=0\n"
    out += f"; @launch kernel={KMAIN} grid=(256,1,1) block=(256,1,1) lds=131072\n"
    out += '.amdgcn_target "amdgcn-amd-amdhsa--gfx950"\n.text\n'
    for nm, body in (("prep_kernel", prep_kernel()), (KMAIN, main_kernel(opt))):
        out += f".globl {nm}\n.p2align 8\n.type {nm},@function\n{nm}:\n" + fmt(body)
    out += '.section .rodata,"a"\n' + kd("prep_kernel", 112, 112, 48) + kd(KMAIN, 392, 256, 48)
    return out

if __name__ == "__main__":
    opt = {}
    path = f"cdna_kernels/{NAME}.s"
    for x in sys.argv[1:]:
        if x.startswith("-o"): path = x[2:]
        else:
            k, v = x.split("="); opt[k] = int(v)
    open(path, "w").write(generate(opt))
    print("wrote", path)
```

```python
import re

REG_RE = re.compile(r'\b([vas])(\d+)\b|\b([vas])\[(\d+):(\d+)\]|\b(vcc|exec|m0|scc)\b')

def regs_of(tok):
    out = []
    for m in REG_RE.finditer(tok):
        if m.group(1): out.append(m.group(1) + m.group(2))
        elif m.group(3): out += [m.group(3) + str(i) for i in range(int(m.group(4)), int(m.group(5)) + 1)]
        else: out.append(m.group(6))
    return out

TRANS = ('v_exp_f32', 'v_log_f32', 'v_rcp_f32', 'v_rsq_f32', 'v_sqrt_f32')

class Ins:
    def __init__(self, text):
        self.text = text
        t = text.split(';')[0].strip()
        self.label = t.endswith(':')
        self.directive = t.startswith('.')
        self.op = t.split()[0] if t else ''
        self.reads = set(); self.writes = set(); self.kind = 'other'
        self.A = self.B = self.C = self.D = None
        if self.label or self.directive or not t: self.kind = 'meta'; return
        rest = t[len(self.op):].strip()
        ops = [x.strip() for x in rest.split(',')] if rest else []
        op = self.op
        R = lambda i: regs_of(ops[i])
        if op.startswith('v_mfma') or op.startswith('v_smfmac'):
            self.kind = 'mfma'
            self.D = R(0); self.A = R(1); self.B = R(2); self.C = R(3)
            self.writes = set(self.D); self.reads = set(self.A + self.B + self.C)
            if op.startswith('v_smfmac'):
                self.A = self.A + self.C; self.C = self.D; self.reads |= set(self.D)
            self.passes = 8 if '32x32' in op else 4
        elif op.startswith('v_cmp'):
            self.kind = 'valu'; self.writes = set(R(0)); self.reads = set(sum((R(i) for i in range(1, len(ops))), []))
        elif op.startswith('v_permlane'):
            self.kind = 'valu'; self.writes = set(R(0) + R(1)); self.reads = set(R(0) + R(1))
        elif op.startswith('v_'):
            self.kind = 'trans' if op.replace('_e32', '').replace('_e64', '') in TRANS else 'valu'
            self.writes = set(R(0)); self.reads = set(sum((R(i) for i in range(1, len(ops))), []))
            if '_co_' in op:
                self.writes = set(R(0) + R(1)); self.reads = set(sum((R(i) for i in range(2, len(ops))), []))
            if op.startswith('v_fmac') or op.startswith('v_dot2c'): self.reads |= self.writes
            if op.startswith('v_cndmask') and len(ops) == 3: self.reads.add('vcc')
        elif op.startswith('ds_bpermute'):
            self.kind = 'ds'; self.writes = set(R(0)); self.reads = set(R(1) + R(2))
        elif op.startswith('ds_read'):
            self.kind = 'ds'; self.writes = set(R(0)); self.reads = set(R(1))
        elif op.startswith('ds_'):
            self.kind = 'ds'; self.reads = set(sum((R(i) for i in range(len(ops))), []))
        elif op.startswith('buffer_load') or op.startswith('global_load'):
            self.kind = 'vmem'
            if ' lds' in t:
                self.reads = set(sum((R(i) for i in range(len(ops))), [])); self.reads.add('m0'); self.lds = True
            else:
                self.writes = set(R(0)); self.reads = set(sum((R(i) for i in range(1, len(ops))), []))
        elif op.startswith('buffer_store') or op.startswith('global_store') or op.startswith('buffer_atomic') or op.startswith('global_atomic'):
            self.kind = 'vmem'; self.reads = set(sum((R(i) for i in range(len(ops))), []))
            self.store_data = set(R(0)) if op.startswith('buffer') else set(R(1))
            self.wide = op.endswith('x4') or op.endswith('x3')
        elif op.startswith('buffer_wbl2') or op.startswith('buffer_inv'):
            self.kind = 'vmem'
        elif op == 's_nop':
            self.kind = 'nop'; self.n = int(ops[0], 0) + 1
        elif op.startswith('s_'):
            self.kind = 'salu'
            if op.startswith('s_cmp') or op.startswith('s_bitcmp') or op.startswith('s_setpc') or op.startswith('s_cbranch') or op in ('s_waitcnt', 's_barrier', 's_branch', 's_endpgm', 's_setprio', 's_sleep'):
                self.reads = set(sum((R(i) for i in range(len(ops))), []))
            else:
                self.writes = set(R(0)); self.reads = set(sum((R(i) for i in range(1, len(ops))), []))
    def states(self):
        if self.kind == 'meta': return 0
        if self.kind == 'nop': return self.n
        return 1

def need(p, c):
    n = 0
    pv = p.kind in ('valu', 'trans'); cv = c.kind in ('valu', 'trans')
    vw = {r for r in p.writes if r[0] in 'va' and r not in ('vcc',)}
    if pv and c.kind == 'mfma' and (vw & c.reads): n = max(n, 2)
    if p.kind == 'mfma':
        D = set(p.D); big = p.passes == 8
        if c.kind == 'mfma':
            if D & (set(c.A) | set(c.B)): n = max(n, 12 if big else 8)
            if D & set(c.C) and not (c.C == p.D and c.passes == p.passes): n = max(n, 10 if big else 6)
            if D & set(c.D) and not (D & set(c.C)): n = max(n, 0)
        elif cv:
            if D & (c.reads | c.writes): n = max(n, 12 if big else 8)
            if set(p.C) & c.writes: n = max(n, 7 if big else 3)
        elif c.kind in ('ds', 'vmem'):
            if D & (c.reads | c.writes): n = max(n, 12 if big else 8)
    if p.kind == 'trans' and c.kind == 'valu' and (vw & c.reads): n = max(n, 1)
    if pv and c.op.startswith('v_permlane') and (vw & c.reads): n = max(n, 2)
    if pv and (c.op.startswith('v_readfirstlane') or c.op.startswith('v_readlane')) and (vw & c.reads): n = max(n, 1)
    if pv and 'dpp' in c.text and (vw & c.reads): n = max(n, 2)
    sw = {r for r in p.writes if r[0] == 's' or r == 'vcc'}
    if pv and sw:
        if cv and (sw & c.reads): n = max(n, 2)
        if c.kind == 'vmem' and (sw & c.reads): n = max(n, 5)
        if c.kind == 'salu' and (sw & c.reads): n = max(n, 1)
    if p.kind == 'salu' and 'm0' in p.writes and c.kind == 'vmem' and 'm0' in c.reads: n = max(n, 1)
    if p.kind == 'vmem' and getattr(p, 'wide', False) and (p.store_data & c.writes): n = max(n, 2)
    return n

def fix_hazards(lines, insert=True, ctx=None, name=''):
    hist = [Ins(x) for x in (ctx or [])]
    out = []
    for text in lines:
        c = Ins(text)
        if c.kind != 'meta':
            dist = 0; req = 0
            for p in reversed(hist):
                if dist >= 20: break
                if p.kind != 'meta':
                    w = need(p, c)
                    if w > dist: req = max(req, w - dist)
                dist += p.states()
            if req > 0:
                if not insert:
                    raise Exception(f"hazard in {name}: need {req} more states before: {text}")
                while req > 0:
                    k = min(req, 16)
                    nop = f"s_nop {k-1}"
                    out.append(nop); hist.append(Ins(nop)); req -= k
        out.append(text); hist.append(c)
    return out
```

```python
import sys, struct
from asmlib import fix_hazards, Ins

NAME = "standalone__kv_cache_quant_int4_int2_kv_with_per_channel_or_per_token_scales__prompt"
KMAIN = NAME + "_kernel"
CSCALE = 1.4426950408889634 / (128 ** 0.5)
def f2u(x): return struct.unpack('<I', struct.pack('<f', x))[0]

def vr(x, n=4): return f"v[{x}:{x+n-1}]"
def ar(x, n=4): return f"a[{x}:{x+n-1}]"
def m16(d, A, B, c): return f"v_mfma_f32_16x16x32_bf16 {vr(d)}, {A}, {B}, {c}"

def srd(L, d, lo, hi, size):
    L += [f"s_mov_b32 s{d}, s{lo}", f"s_mov_b32 s{d+1}, s{hi}", f"s_mov_b32 s{d+2}, {size:#x}", f"s_mov_b32 s{d+3}, 0x20000"]

def unpack(L, dst, src, n):
    for i in range(n):
        L.append(f"v_lshlrev_b32 v{dst+2*i}, 16, v{src+i}")
        L.append(f"v_and_b32 v{dst+2*i+1}, 0xffff0000, v{src+i}")

def round_pair(L, a, b, t):
    L.append(f"v_cvt_pk_bf16_f32 v{t}, v{a}, v{b}")
    L.append(f"v_lshlrev_b32 v{a}, 16, v{t}")
    L.append(f"v_and_b32 v{b}, 0xffff0000, v{t}")

def stamp(L, opt, k):
    if opt.get('stamp', 0) == 3:
        if k in (11, 12): return
        if k == 2: L.append("s_memtime s[66:67]")
        if k == 3: L.append("s_memtime s[68:69]")
    if opt.get('stamp', 0): L.append(f"s_memrealtime s[{44+2*k}:{45+2*k}]")

def stamp_store(L, opt, n, ws_lo, idx_sgpr, base, shift):
    if not opt.get('stamp', 0): return
    a = L.append
    a("s_waitcnt lgkmcnt(0)")
    a(f"s_add_u32 s72, s{ws_lo}, {base:#x}"); a(f"s_addc_u32 s73, s{ws_lo+1}, 0"); a("s_mov_b32 s74, 0x100000"); a("s_mov_b32 s75, 0x20000")
    a(f"s_lshl_b32 s76, s{idx_sgpr}, {shift}")
    a("v_mov_b32 v5, 0")
    a("s_mov_b64 exec, 1")
    for k in range(n):
        a(f"v_mov_b32 v6, s{44+2*k}"); a(f"v_mov_b32 v7, s{45+2*k}")
        a(f"buffer_store_dwordx2 v[6:7], v5, s[72:75], s76 offen offset:{8*k}")
        a("s_waitcnt vmcnt(0)")

def prep_kernel(opt):
    L = []
    a = L.append
    a("s_cmp_ge_u32 s2, 512")
    a("s_cbranch_scc1 L_prep_end")
    stamp(L, opt, 0)
    a("s_load_dwordx4 s[4:7], s[0:1], 8")
    a("s_load_dwordx8 s[8:15], s[0:1], 24")
    a("s_load_dwordx2 s[16:17], s[0:1], 72")
    a("v_lshrrev_b32 v1, 6, v0")
    a("v_and_b32 v0, 63, v0")
    a("v_readfirstlane_b32 s20, v1")
    a("s_and_b32 s18, s2, 7")
    a("s_lshr_b32 s19, s2, 3")
    a("s_lshl_b32 s21, s18, 20")
    a("s_lshl_b32 s22, s19, 14")
    a("s_add_u32 s21, s21, s22")
    a("s_add_u32 s22, s21, 8192")
    a("s_add_u32 s40, s21, 4096")
    a("s_waitcnt lgkmcnt(0)")
    stamp(L, opt, 2)
    srd(L, 36, 16, 17, 8 << 20)
    a("s_cmp_ge_u32 s20, 2")
    a("s_cbranch_scc1 L_prep_v")
    srd(L, 24, 4, 5, 8 << 20)
    srd(L, 28, 8, 9, 32768)
    srd(L, 32, 10, 11, 32768)
    a("v_and_b32 v5, 15, v0")
    a("v_lshrrev_b32 v6, 4, v0")
    a("v_lshlrev_b32 v2, 9, v5")
    a("v_lshl_add_u32 v2, v6, 5, v2")
    a("s_lshl_b32 s23, s20, 7")
    a("v_add_u32 v2, s23, v2")
    for u in range(4):
        so = "s21" if u < 2 else "s22"
        for hh in range(2):
            a(f"buffer_load_dwordx4 {vr(8+8*u+4*hh)}, v2, s[24:27], {so} offen offset:{(u%2)*256+hh*16}")
    a("s_lshl_b32 s23, s20, 6")
    a("v_lshlrev_b32 v3, 4, v6")
    a("v_add_u32 v3, s23, v3")
    a("s_lshl_b32 s23, s18, 12")
    a("s_lshr_b32 s41, s19, 2")
    a("s_lshl_b32 s41, s41, 8")
    a("s_add_u32 s23, s23, s41")
    a(f"buffer_load_dwordx4 {vr(40)}, v3, s[28:31], s23 offen")
    a(f"buffer_load_dwordx4 {vr(44)}, v3, s[28:31], s23 offen offset:128")
    a(f"buffer_load_dwordx4 {vr(48)}, v3, s[32:35], s23 offen")
    a(f"buffer_load_dwordx4 {vr(52)}, v3, s[32:35], s23 offen offset:128")
    a("s_lshl_b32 s23, s20, 10")
    a("v_lshlrev_b32 v4, 4, v0")
    a("v_add_u32 v4, s23, v4")
    a(f"s_mov_b32 s42, {f2u(CSCALE):#x}")
    a("s_waitcnt vmcnt(0)")
    stamp(L, opt, 3)
    unpack(L, 64, 40, 16)
    for u in range(4):
        b = 8 + 8*u; sc = 64 + 8*(u % 2); zz = 80 + 8*(u % 2)
        for i in range(8): a(f"v_cvt_f32_i32 v{b+i}, v{b+i}")
        for i in range(0, 8, 2): round_pair(L, b+i, b+i+1, 56 + i//2)
        for i in range(8): a(f"v_sub_f32 v{b+i}, v{b+i}, v{zz+i}")
        for i in range(0, 8, 2): round_pair(L, b+i, b+i+1, 56 + i//2)
        for i in range(8): a(f"v_mul_f32 v{b+i}, v{b+i}, v{sc+i}")
        for i in range(0, 8, 2): round_pair(L, b+i, b+i+1, 56 + i//2)
        for i in range(8): a(f"v_mul_f32 v{b+i}, s42, v{b+i}")
        for i in range(0, 8, 2): a(f"v_cvt_pk_bf16_f32 v{96+4*u+i//2}, v{b+i}, v{b+i+1}")
        so = "s21" if u < 2 else "s40"
        a(f"buffer_store_dwordx4 {vr(96+4*u)}, v4, s[36:39], {so} offen offset:{(u%2)*2048}")
    a("s_branch L_prep_fin")
    a("L_prep_v:")
    srd(L, 24, 6, 7, 8 << 20)
    srd(L, 28, 12, 13, 32768)
    srd(L, 32, 14, 15, 32768)
    a("v_and_b32 v5, 31, v0")
    a("v_lshrrev_b32 v6, 5, v0")
    a("s_sub_u32 s23, s20, 2")
    a("s_lshl_b32 s23, s23, 1")
    a("v_add_u32 v6, s23, v6")
    a("v_lshlrev_b32 v2, 11, v6")
    a("v_lshl_add_u32 v2, v5, 4, v2")
    for i in range(8):
        so = "s21" if i < 4 else "s22"
        a(f"buffer_load_dwordx4 {vr(8+4*i)}, v2, s[24:27], {so} offen offset:{(i%4)*512}")
    a("v_lshlrev_b32 v3, 3, v6")
    a("s_lshl_b32 s23, s18, 12")
    a("s_lshl_b32 s41, s19, 6")
    a("s_add_u32 s23, s23, s41")
    a(f"buffer_load_dwordx2 {vr(40,2)}, v3, s[28:31], s23 offen")
    a(f"buffer_load_dwordx2 {vr(42,2)}, v3, s[28:31], s23 offen offset:32")
    a(f"buffer_load_dwordx2 {vr(44,2)}, v3, s[32:35], s23 offen")
    a(f"buffer_load_dwordx2 {vr(46,2)}, v3, s[32:35], s23 offen offset:32")
    a("v_lshrrev_b32 v7, 3, v5")
    a("v_lshlrev_b32 v4, 11, v7")
    a("v_and_b32 v7, 1, v5")
    a("v_lshl_add_u32 v4, v7, 10, v4")
    a("v_lshl_add_u32 v4, v6, 8, v4")
    a("v_bfe_u32 v7, v5, 1, 2")
    a("v_lshl_add_u32 v4, v7, 6, v4")
    a("s_waitcnt vmcnt(0)")
    stamp(L, opt, 3)
    unpack(L, 64, 40, 8)
    for i in range(32): a(f"v_cvt_f32_i32 v{8+i}, v{8+i}")
    for rr in range(4):
        e = lambda i: 8 + 4*i + rr
        for i in range(0, 8, 2): round_pair(L, e(i), e(i+1), 56 + i//2)
        for i in range(8): a(f"v_sub_f32 v{e(i)}, v{e(i)}, v{72+i}")
        for i in range(0, 8, 2): round_pair(L, e(i), e(i+1), 56 + i//2)
        for i in range(8): a(f"v_mul_f32 v{e(i)}, v{e(i)}, v{64+i}")
        for i in range(0, 8, 2): a(f"v_cvt_pk_bf16_f32 v{96+4*rr+i//2}, v{e(i)}, v{e(i+1)}")
        a(f"buffer_store_dwordx4 {vr(96+4*rr)}, v4, s[36:39], s22 offen offset:{rr*16}")
    a("L_prep_fin:")
    if opt.get('stamp', 0):
        a("s_waitcnt vmcnt(0)")
        stamp(L, opt, 1)
        a("s_lshl_b32 s77, s2, 2"); a("s_add_u32 s77, s77, s20")
        stamp_store(L, opt, 4, 16, 77, 17 << 20, 5)
    a("L_prep_end:")
    a("s_endpgm")
    return fix_hazards(L)

def SB(buf, qt): return 64 + buf*32 + qt*8
SWAP_EVEN = [0]
def S16(buf, qt, r=0):
    if SWAP_EVEN[0] and qt % 2 == 0: r ^= 4
    return SB(buf, qt) + r
def PR(buf, qt): return S16(buf, qt, 0)
def NEGM(qt): return 32 + qt*4
def LS(qt): return 48 + qt*4
def OT(qt, dt): return 128 + (qt*8 + dt)*4
def QF(qt, ks): return (qt*4 + ks)*4
def FR(f): return 64 + f*4
ONES = 128
SIDX = 11
VONE = 10

def smax_reduce(L, regs, op, T=24):
    for k, r in enumerate(regs): L.append(f"v_mov_b32 v{T+k}, v{r}")
    for k, r in enumerate(regs): L.append(f"v_permlane32_swap_b32 v{r}, v{T+k}")
    for k, r in enumerate(regs): L.append(f"{op} v{r}, v{r}, v{T+k}")
    for k, r in enumerate(regs): L.append(f"v_mov_b32 v{T+k}, v{r}")
    for k, r in enumerate(regs): L.append(f"v_permlane16_swap_b32 v{r}, v{T+k}")
    for k, r in enumerate(regs): L.append(f"{op} v{r}, v{r}, v{T+k}")

def sum_init(L, msum):
    a = L.append
    if msum == 0:
        for i in range(12, 16): a(f"v_mov_b32 v{i}, 0")
    elif msum == 1:
        for i in range(48, 64): a(f"v_mov_b32 v{i}, 0")
        a("v_mov_b32 v5, 0x3f803f80")
        for i in range(4): a(f"v_accvgpr_write_b32 a{ONES+i}, v5")
    elif msum == 2:
        for i in range(48, 56): a(f"v_mov_b32 v{i}, 0")
    elif msum == 3:
        for i in range(12, 16): a(f"v_mov_b32 v{i}, 0")
        a(f"v_mov_b32 v{VONE}, 0x3f803f80")
    elif msum == 4:
        for i in range(48, 56): a(f"v_mov_b32 v{i}, 0")
        a("v_lshrrev_b32 v12, 4, v0")
        a("v_xor_b32 v12, v12, v0")
        a("v_and_b32 v12, 2, v12")
        a("v_cmp_eq_u32 vcc, 0, v12")
        a("v_mov_b32 v12, 0x3f803f80")
        a("v_and_b32 v13, 1, v0")
        a("v_cndmask_b32 v12, 0, v12, vcc")
        a("v_cmp_eq_u32 vcc, 1, v13")
        for i in range(4): a(f"v_accvgpr_write_b32 a{ONES+i}, v12")
        a(f"v_mov_b32 v{SIDX}, 0x44444444")
        a("v_mov_b32 v13, 0xeeeeeeee")
        a(f"v_cndmask_b32 v{SIDX}, v{SIDX}, v13, vcc")

def sum_mfmas(buf, msum):
    if msum == 1: return [m16(LS(qt), ar(ONES), vr(PR(buf, qt)), vr(LS(qt))) for qt in range(4)]
    if msum == 4: return [f"v_smfmac_f32_16x16x64_bf16 {vr(48+4*k)}, {ar(ONES)}, {vr(PR(buf, 2*k), 8)}, v{SIDX}" for k in range(2)]
    return []

def sum_final(L, msum):
    a = L.append
    if msum == 1: return [LS(qt) for qt in range(4)]
    if msum == 4:
        for qt in range(4): a(f"v_add_f32 v{12+qt}, v{48+2*qt}, v{49+2*qt}")
        return [12, 13, 14, 15]
    if msum == 2:
        for qt in range(4): a(f"v_add_f32 v{12+qt}, v{48+2*qt}, v{49+2*qt}")
    smax_reduce(L, [12, 13, 14, 15], "v_add_f32")
    return [12, 13, 14, 15]

def cost(ins):
    op = ins.split()[0]
    if op.endswith(':'): return 0
    if op.startswith('v_mfma') or op.startswith('v_smfmac'): return 8
    if op == 'v_exp_f32': return 8
    if op.startswith('buffer_load'): return 8
    return 4

def step_gaps(par, mode, opt):
    nb = (par + 1) % 2; cb = par
    msum = opt.get('msum', 0)
    D = opt.get('delta', 12)
    gaps = [[None] for _ in range(64)]
    i = 0
    qk = [(kt, ks, qt) for kt in range(2) for qt in range(4) for ks in range(4)] if opt.get('chain', 0) else [(kt, ks, qt) for kt in range(2) for ks in range(4) for qt in range(4)]
    for kt, ks, qt in qk:
        d = S16(nb, qt, kt*4)
        c = vr(d) if ks else ("0" if mode == 'first' else vr(NEGM(qt)))
        if mode != 'last': gaps[i][0] = m16(d, ar(FR(kt*4+ks)), ar(QF(qt, ks)), c)
        i += 1
    pvo = [(dt, qt) for qt in range(4) for dt in range(8)] if opt.get('pvq', 0) == 1 else [(dt, qt) for dt in range(8) for qt in range(4)]
    if opt.get('pvq', 0) == 2: pvo = [(h*4 + dt, qt) for h in range(2) for qt in range(4) for dt in range(4)]
    for dt, qt in pvo:
        d = OT(qt, dt)
        if mode != 'first': gaps[i][0] = m16(d, ar(FR(8+dt)), vr(PR(cb, qt)), vr(d))
        i += 1
    def elem(e, buf):
        kt = e // 16; qt = (e % 16)//4; r = e % 4
        return S16(buf, qt, kt*4 + r), qt, kt, r
    def at(t):
        e = t - D
        if e >= 0: return e, nb, mode != 'last'
        return e + 32, cb, mode != 'first'
    for t in range(32):
        e, b, ok = at(t); r, qt, kt, rr = elem(e, b)
        if ok:
            gaps[2*t].append(f"v_exp_f32 v{r}, v{r}")
            if msum == 0: gaps[2*t+1].append(f"v_add_f32 v{12+qt}, v{12+qt}, v{r}")
        e, b, ok = at(t-1)
        if e % 2 == 1 and ok:
            r, qt, kt, rr = elem(e, b)
            if msum == 2: gaps[2*t+1].append(f"v_pk_add_f32 {vr(48+2*qt,2)}, {vr(48+2*qt,2)}, {vr(r-1,2)}")
            gaps[2*t+1].append(f"v_cvt_pk_bf16_f32 v{PR(b, qt) + kt*2 + rr//2}, v{r-1}, v{r}")
        e, b, ok = at(t-2)
        if e % 2 == 1 and ok and msum == 3:
            r, qt, kt, rr = elem(e, b)
            gaps[2*t+1].append(f"v_dot2c_f32_bf16 v{12+qt}, v{PR(b, qt) + kt*2 + rr//2}, v{VONE}")
    for f0 in range(16):
        t = 2*f0 + (1 if D % 2 == 0 else 0)
        f = (f0 + 8) % 16
        if f0 < 8:
            if mode == 'first': continue
            ins = f"ds_read_b128 {ar(FR(f))}, v2 offset:{par*16384 + 8192 + (f-8)*1024}"
        else:
            if mode == 'last': continue
            ins = f"ds_read_b128 {ar(FR(f))}, v3 offset:{par*16384 + f*1024}"
        gaps[2*t+1].insert(1, ins)
    own = {}
    if mode != 'first':
        sm = sum_mfmas(cb, msum)
        pos = opt.get('smpos', [37, 53] if msum == 4 else [37, 45, 53, 59])
        for p, m in zip(pos, sm): own[p] = [m]
    def room(g, extra=False):
        lst = own[g] if extra else gaps[g]
        return 16 - 8 - sum(cost(x) for x in lst[1:])
    def place(lo, hi, ins, tail=False):
        for g in range(lo, hi + 1):
            if room(g) >= cost(ins):
                k = 1
                if len(gaps[g]) > 1 and gaps[g][1].startswith('ds_read'): k = 2
                gaps[g].insert(k, ins); return g
            if g in own and room(g, True) >= cost(ins):
                own[g].append(ins); return g
        g = lo
        if cost(ins) > 4:
            for g2 in range(lo, hi + 1):
                if room(g2) >= 4: g = g2; break
        gaps[g].insert(1, ins); return g
    W = lambda n: f"s_waitcnt lgkmcnt({n})"
    fsync = opt.get('fsync', 0)
    skew = opt.get('skew', 0)
    dma = lambda k: f"buffer_load_dwordx4 v1, s[12:15], {'s22' if skew else 's23'} offen offset:{k*1024}{opt.get('dmaflag', ' sc1') if opt.get('fused', 0) else ''} lds"
    def place_dma(g, ins):
        for g2 in range(g, g + 8):
            if g2 in own and len(own[g2]) == 1:
                own[g2].append(ins); return g2
            if len(gaps[g2]) == 2 and gaps[g2][1].startswith('v_cvt_pk') and room(g2 + 2) >= 4 and opt.get('dmaclean', 1):
                gaps[g2 + 2].append(gaps[g2].pop()); gaps[g2].append(ins); return g2
        return place(g, g + 6, ins)
    if mode == 'loop':
        dp = opt.get('dmapos', [4, 18 if fsync else 16, 36, 52])
        gd = [place_dma(dp[0], dma(2)), place_dma(dp[1], dma(3)), place_dma(dp[2], dma(0)), place_dma(dp[3], dma(1))]
        assert gd[1] <= 21 and gd[2] >= 35
    if mode == 'loop':
        for g in range(0, 64, 16):
            n = 4
            if opt.get('pvq', 0) == 1 and g == 48: gaps[35].append(W(1))
            else: gaps[(g-1) % 64].append(W(n))
    elif mode == 'first':
        gaps[63].append(W(4))
    else:
        gaps[31].append(W(4))
        gaps[47].append(W(0))
    if mode == 'loop':
        if par == 0 and not skew:
            g = place(22, 23, "s_cmp_lt_u32 s24, 29")
            g = place(g+1, 25, "s_cselect_b32 s14, s25, 0")
        if skew: g = 22
        if par == 0 and not fsync:
            g = place(g+1, 27, "s_waitcnt vmcnt(8)")
            g = place(g+1, 28, "s_barrier")
        if par == 0 and fsync:
            place(16, 18, "ds_read_b32 v9, v8")
            gaps[33].insert(1, "v_cmp_gt_u32 vcc, v7, v9")
            gaps[35].insert(1, "s_cbranch_vccnz L_spin")
            gaps[35].insert(2, "L_spin_ret:")
        g = place(23 if par == 1 else g+1, 30, "s_add_u32 s22, s22, 0x4000")
        if opt.get('rot', 0):
            g = place(g+1, 31, "s_add_u32 s23, s22, s99")
            g = place(g+1, 32, "s_and_b32 s23, s23, 0x3ffff")
            g = place(g+1, 33, "s_and_b32 s98, s22, 0xc0000")
            g = place(g+1, 34, "s_or_b32 s23, s23, s98")
            g -= 2
        elif not skew: g = place(g+1, 33, "s_and_b32 s23, s22, 0xfffff")
        g = place(g+1, 34, "s_and_b32 m0, s22, 0x1ffff")
        if par == 0:
            place(56, 62, "s_cmp_eq_u32 s24, 31")
        else:
            g = place(39 if skew else 54, 60, "s_add_u32 s24, s24, 1")
            if opt.get('hooks', 0): place(g+1, 62, f"s_bitcmp1_b32 {opt.get('hmask', 0x3e):#x}, s24")
            if fsync and skew:
                place(44, 47, "v_add_u32 v7, 1, v7")
                g = place(opt.get('pubpos', 57), 60, "s_waitcnt vmcnt(2)")
                assert g > gd[3]
                g = place(g+1, 62, "ds_write_b32 v6, v7")
            elif fsync:
                g = place(44, 47, "v_add_u32 v7, 1, v7")
                assert gd[3] > 50
                g = place(48, 49, "s_waitcnt vmcnt(5)")
                g = place(g+1, 50, "ds_write_b32 v6, v7")
                assert g <= 50
    if par == 1 and mode != 'last': place(40, 50, "v_mov_b32 v2, v3")
    if par == 0:
        g = place(8, 14, "v_add_u32 v3, 0x8000, v3")
        place(g+1, 19, "v_and_b32 v3, 0x1ffff, v3")
    out = []
    for g in range(64):
        out.append(gaps[g])
        if g in own: out.append(own[g])
    drop = []
    if mode == 'loop':
        if opt.get('nodma', 0): drop.append('buffer_load')
        if opt.get('nobar', 0): drop += ['s_barrier']
        if opt.get('novm', 0): drop += ['s_waitcnt vmcnt']
        if opt.get('nosum', 0): drop += ['v_smfmac']
        if opt.get('nolgkm', 0): drop += ['s_waitcnt lgkm']
        if opt.get('nods', 0): drop += ['ds_read']
    out = [[x for x in g if x is None or not any(x.startswith(d) for d in drop)] for g in out]
    return out

def flat(gaps):
    L = []
    for g in gaps: L += [x for x in g if x is not None]
    return L

def plain_prologue(opt):
    msum = opt.get('msum', 0)
    P = []
    a = P.append
    a("s_cmp_ge_u32 s2, 256")
    a("s_cbranch_scc1 L_end")
    stamp(P, opt, 0)
    a("s_load_dwordx2 s[4:5], s[0:1], 0")
    a("s_load_dwordx2 s[6:7], s[0:1], 56")
    a("s_load_dwordx2 s[26:27], s[0:1], 72")
    a("v_lshrrev_b32 v5, 6, v0")
    a("v_and_b32 v0, 63, v0")
    a("v_readfirstlane_b32 s20, v5")
    a("v_lshlrev_b32 v1, 4, v0")
    a("s_and_b32 s28, s2, 7")
    a("s_lshr_b32 s29, s2, 3")
    a("s_lshl_b32 s22, s29, 15")
    a("s_and_b32 s30, s22, 0x1ffff")
    a("v_add_u32 v3, s30, v1")
    a("s_lshl_b32 s21, s20, 12")
    a("s_add_u32 s22, s22, s21")
    a("s_lshl_b32 s31, s28, 5")
    a("s_add_u32 s31, s31, s29")
    a("s_lshl_b32 s31, s31, 16")
    a("s_lshl_b32 s30, s20, 14")
    a("s_add_u32 s31, s31, s30")
    a("s_add_u32 s32, s31, 4096"); a("s_add_u32 s33, s31, 8192"); a("s_add_u32 s34, s31, 12288")
    a("v_and_b32 v5, 15, v0")
    a("v_lshrrev_b32 v6, 4, v0")
    a("v_lshlrev_b32 v4, 8, v5")
    a("v_lshl_add_u32 v4, v6, 4, v4")
    a("s_lshl_b32 s30, s28, 20")
    a("s_mov_b32 s25, 0x100000")
    a("s_mov_b32 s24, 0")
    a("s_mov_b32 s35, 0")
    a("s_waitcnt lgkmcnt(0)")
    stamp(P, opt, 6)
    srd(P, 8, 4, 5, 16 << 20)
    srd(P, 16, 6, 7, 16 << 20)
    a("s_add_u32 s12, s26, s30"); a("s_addc_u32 s13, s27, 0"); a("s_mov_b32 s14, 0x100000"); a("s_mov_b32 s15, 0x20000")
    def dma_group(n):
        a("s_and_b32 s23, s22, 0xfffff")
        a("s_and_b32 m0, s22, 0x1ffff")
        a("s_nop 0")
        for k in range(n): a(f"buffer_load_dwordx4 v1, s[12:15], s23 offen offset:{k*1024} lds")
    dma_group(4)
    for qt in range(4):
        for ks in range(4):
            a(f"buffer_load_dwordx4 {ar(QF(qt,ks))}, v4, s[8:11], s{31+qt} offen offset:{ks*64}")
    for st in range(1, 6):
        a("s_add_u32 s22, s22, 0x4000")
        dma_group(4 if st < 5 else 2)
    stamp(P, opt, 7)
    for i in range(128, 256): a(f"v_mov_b32 v{i}, 0")
    sum_init(P, msum)
    stamp(P, opt, 8)
    if opt.get('stamp', 0):
        a("s_waitcnt vmcnt(34)")
        stamp(P, opt, 9)
        a("s_waitcnt vmcnt(18)")
        stamp(P, opt, 10)
    a("s_waitcnt vmcnt(14)")
    a("s_barrier")
    stamp(P, opt, 1)
    for f in range(8): a(f"ds_read_b128 {ar(FR(f))}, v3 offset:{f*1024}")
    return P

def main_kernel(opt, P=None):
    msum = opt.get('msum', 0)
    SWAP_EVEN[0] = 1 if msum == 4 else 0
    if P is None: P = plain_prologue(opt)
    a = P.append
    g = step_gaps(1, 'first', opt)
    for i in range(32):
        if i % 4 == 0: a(f"s_waitcnt lgkmcnt({7 - i//4})")
        a(g[i][0]); g[i][0] = None
    for qt in range(4):
        s = SB(0, qt); m = 16 + qt
        a(f"v_max3_f32 v{m}, v{s}, v{s+1}, v{s+2}")
        a(f"v_max3_f32 v{m}, v{m}, v{s+3}, v{s+4}")
        a(f"v_max3_f32 v{m}, v{m}, v{s+5}, v{s+6}")
        a(f"v_max_f32 v{m}, v{m}, v{s+7}")
    smax_reduce(P, [16, 17, 18, 19], "v_max_f32")
    for qt in range(4):
        for r in range(4): a(f"v_sub_f32 v{NEGM(qt)+r}, 0, v{16+qt}")
        for r in range(8): a(f"v_sub_f32 v{S16(0,qt,r)}, v{S16(0,qt,r)}, v{16+qt}")
    if opt.get('fsync', 0):
        a("v_lshlrev_b32 v6, 2, v0")
        a("v_add_u32 v6, 0x20100, v6")
        a("v_and_b32 v8, 3, v0")
        a("v_lshl_add_u32 v8, v8, 8, v6")
        a("s_lshl_b32 s36, s20, 8")
        a("v_add_u32 v6, s36, v6")
        a("v_mov_b32 v7, 1")
    P += flat(g)[:-1]
    if opt.get('fsync', 0):
        a("s_waitcnt vmcnt(6)")
        a("ds_write_b32 v6, v7")
        a("s_waitcnt lgkmcnt(5)")
    else: a("s_waitcnt lgkmcnt(4)")
    stamp(P, opt, 2)
    P = fix_hazards(P)
    ev = flat(step_gaps(0, 'loop', opt)) + ["s_cbranch_scc1 L_tail"]
    od = flat(step_gaps(1, 'loop', opt)) + ["s_branch L_loop"]
    fix_hazards(ev + od, insert=False, ctx=P, name='loop-entry')
    fix_hazards(ev + od, insert=False, ctx=ev + od, name='loop-back')
    B = [".p2align 6", "L_loop:"] + ev + od
    T = ["L_tail:"] + flat(step_gaps(1, 'last', opt))
    a = T.append
    stamp(T, opt, 3)
    a("L_epi:")
    lr = sum_final(T, msum)
    a(f"s_mov_b32 s30, {f2u(2.0**40):#x}")
    a(f"v_max3_f32 v16, v{lr[0]}, v{lr[1]}, v{lr[2]}")
    a(f"v_max_f32 v16, v16, v{lr[3]}")
    a(f"v_add_f32 v17, v{lr[0]}, v{lr[1]}")
    a(f"v_add_f32 v18, v{lr[2]}, v{lr[3]}")
    a("v_add_f32 v17, v17, v18")
    a("v_cmp_nlt_f32 vcc, v17, s30")
    a("s_cmp_lg_u32 s35, 0")
    a("s_cbranch_scc1 L_fin")
    a("s_cbranch_vccnz L_slow")
    a("L_fin:")
    for qt in range(4): a(f"v_rcp_f32 v{20+qt}, v{lr[qt]}")
    for qt in range(4):
        for s in range(4):
            o = OT(qt, 2*s)
            for r in range(8): a(f"v_mul_f32 v{o+r}, v{o+r}, v{20+qt}")
            for r in range(0, 8, 2): a(f"v_cvt_pk_bf16_f32 v{o+r//2}, v{o+r}, v{o+r+1}")
            a(f"buffer_store_dwordx4 {vr(o)}, v4, s[16:19], s{31+qt} offen offset:{s*64} sc0 sc1")
    if opt.get('stamp', 0):
        stamp(T, opt, 4)
        a("s_waitcnt vmcnt(0)")
        stamp(T, opt, 5)
        a("s_lshl_b32 s77, s2, 2"); a("s_add_u32 s77, s77, s20")
        if opt.get('stamp', 0) == 2:
            a("s_waitcnt lgkmcnt(0)")
            a("s_cmp_gt_u32 s77, 4"); a("s_cbranch_scc1 L_end")
            a("s_cmp_lg_u32 s20, 0"); a("s_cbranch_scc1 L_end")
            srd(T, 72, 96, 97, 256)
            a("s_lshl_b32 s76, s2, 5")
            a("v_mov_b32 v5, 0"); a("s_mov_b64 exec, 1")
            for n, k in enumerate(opt.get('dbgst', [8, 9, 1, 2, 3, 5])):
                a(f"s_sub_u32 s78, s{44+2*k}, s44"); a("v_mov_b32 v6, s78")
                a(f"buffer_store_dword v6, v5, s[72:75], s76 offen offset:{8+4*n}")
                a("s_waitcnt vmcnt(0)")
        else:
            stamp_store(T, opt, 13, 26, 77, 16 << 20, 7)
    a("L_end:")
    a("s_endpgm")
    T = fix_hazards(T, ctx=ev)
    X = []
    if opt.get('fsync', 0):
        X += ["L_spin:", "ds_read_b32 v9, v8", "s_waitcnt lgkmcnt(0)", "v_cmp_gt_u32 vcc, v7, v9", "s_cbranch_vccnz L_spin", "s_branch L_spin_ret"]
    X += ["L_slow:"]
    a = X.append
    a("s_mov_b32 s35, 1")
    a("s_mov_b32 s14, 0x100000")
    a("s_waitcnt vmcnt(0) lgkmcnt(0)")
    for qt in range(4): a(f"v_mov_b32 v{16+qt}, 0xff800000")
    a("s_mov_b32 s36, 0")
    a("L_slow1:")
    a("s_add_u32 s37, s36, 4096")
    for f in range(8): a(f"buffer_load_dwordx4 {ar(FR(f))}, v1, s[12:15], s{36+f//4} offen offset:{(f%4)*1024} sc1")
    a("s_waitcnt vmcnt(0)")
    for kt in range(2):
        for ks in range(4):
            for qt in range(4):
                d = S16(0, qt, kt*4)
                a(m16(d, ar(FR(kt*4+ks)), ar(QF(qt, ks)), vr(d) if ks else "0"))
    a("s_nop 7")
    for qt in range(4):
        s = SB(0, qt); m = 16 + qt
        for r in range(0, 8, 2): a(f"v_max3_f32 v{m}, v{m}, v{s+r}, v{s+r+1}")
    a("s_add_u32 s36, s36, 0x4000")
    a("s_cmp_lt_u32 s36, 0x100000")
    a("s_cbranch_scc1 L_slow1")
    smax_reduce(X, [16, 17, 18, 19], "v_max_f32")
    for qt in range(4):
        for r in range(4): a(f"v_sub_f32 v{NEGM(qt)+r}, 0, v{16+qt}")
    for i in range(128, 256): a(f"v_mov_b32 v{i}, 0")
    sum_init(X, msum)
    a("s_mov_b32 s36, 0")
    a("L_slow2:")
    a("s_add_u32 s37, s36, 4096"); a("s_add_u32 s38, s36, 8192"); a("s_add_u32 s39, s36, 12288")
    for f in range(16): a(f"buffer_load_dwordx4 {ar(FR(f))}, v1, s[12:15], s{36+f//4} offen offset:{(f%4)*1024} sc1")
    a("s_waitcnt vmcnt(0)")
    for kt in range(2):
        for ks in range(4):
            for qt in range(4):
                d = S16(0, qt, kt*4)
                a(m16(d, ar(FR(kt*4+ks)), ar(QF(qt, ks)), vr(d) if ks else vr(NEGM(qt))))
    a("s_nop 7")
    for qt in range(4):
        s = SB(0, qt)
        for r in range(8): a(f"v_exp_f32 v{s+r}, v{s+r}")
        if msum in (0, 3):
            for r in range(8): a(f"v_add_f32 v{12+qt}, v{12+qt}, v{s+r}")
        if msum == 2:
            for r in range(8): a(f"v_add_f32 v{48+2*qt}, v{48+2*qt}, v{s+r}")
        for r in range(0, 8, 2): a(f"v_cvt_pk_bf16_f32 v{PR(0,qt)+r//2}, v{S16(0,qt,r)}, v{S16(0,qt,r+1)}")
    for dt in range(8):
        for qt in range(4):
            a(m16(OT(qt, dt), ar(FR(8+dt)), vr(PR(0, qt)), vr(OT(qt, dt))))
    X += sum_mfmas(0, msum)
    a("s_nop 7")
    a("s_add_u32 s36, s36, 0x4000")
    a("s_cmp_lt_u32 s36, 0x100000")
    a("s_cbranch_scc1 L_slow2")
    a("s_branch L_epi")
    X = fix_hazards(X)
    return P + B + T + X

def kd(name, nv, acc, ns=96):
    return f""".p2align 6
.amdhsa_kernel {name}
  .amdhsa_next_free_vgpr {nv}
  .amdhsa_next_free_sgpr {ns}
  .amdhsa_accum_offset {acc}
  .amdhsa_group_segment_fixed_size 0
  .amdhsa_kernarg_size 80
  .amdhsa_user_sgpr_count 2
  .amdhsa_user_sgpr_kernarg_segment_ptr 1
  .amdhsa_system_sgpr_workgroup_id_x 1
  .amdhsa_float_denorm_mode_32 3
.end_amdhsa_kernel
"""

def fmt(L):
    return "\n".join((x if (x.endswith(":") or x.startswith(".")) else "    " + x) for x in L) + "\n"

def generate(opt):
    hdr = open(f"cdna_kernels/{NAME}.s.ref").read().split("; Override launch")[0]
    out = hdr
    out += "; Two launches: prep_kernel dequantises K/V into MFMA-fragment order (bf16) in d_ws, the main kernel is flash attention.\n"
    out += f"; @launch kernel=prep_kernel grid=(512,1,1) block=(256,1,1) lds=0\n"
    out += f"; @launch kernel={KMAIN} grid=(256,1,1) block=(256,1,1) lds=131072\n"
    out += '.amdgcn_target "amdgcn-amd-amdhsa--gfx950"\n.text\n'
    for nm, body in (("prep_kernel", prep_kernel(opt)), (KMAIN, main_kernel(opt))):
        out += f".globl {nm}\n.p2align 8\n.type {nm},@function\n{nm}:\n" + fmt(body)
    out += '.section .rodata,"a"\n' + kd("prep_kernel", 112, 112, 80) + kd(KMAIN, 392, 256, 80)
    return out

if __name__ == "__main__":
    opt = {}
    path = f"cdna_kernels/{NAME}.s"
    for x in sys.argv[1:]:
        if x.startswith("-o"): path = x[2:]
        else:
            k, v = x.split("="); opt[k] = int(v)
    open(path, "w").write(generate(opt))
    print("wrote", path)
```

```python
import sys
from gen import *

def pk(op, d, a, b, bsel=None, neg_b=False):
    mods = ""
    if bsel is not None:
        if b % 2 == 0: mods += " op_sel_hi:[1,0]"
        else: b -= 1; mods += " op_sel:[0,1] op_sel_hi:[1,1]"
    if neg_b: mods += " neg_lo:[0,1] neg_hi:[0,1]"
    return f"{op} {vr(d,2)}, {vr(a,2)}, {vr(b,2)}{mods}"

def fused_prologue(opt):
    msum = opt.get('msum', 0); exact = opt.get('exact', 1)
    ST = ""
    LD = " nt" if opt.get('ldnt', 0) else ""
    P = []
    a = P.append
    a("s_cmp_ge_u32 s2, 256")
    a("s_cbranch_scc1 L_end")
    stamp(P, opt, 0)
    a("s_load_dwordx16 s[80:95], s[0:1], 0")
    a("s_load_dwordx4 s[96:99], s[0:1], 64")
    a("s_memrealtime s[38:39]")
    a("v_lshrrev_b32 v5, 6, v0")
    a("v_and_b32 v0, 63, v0")
    a("v_readfirstlane_b32 s20, v5")
    a("v_lshlrev_b32 v1, 4, v0")
    a("s_and_b32 s28, s2, 7")
    a("s_lshr_b32 s29, s2, 3")
    a("s_lshl_b32 s22, s29, 15")
    a("s_and_b32 s30, s22, 0x1ffff")
    a("v_add_u32 v3, s30, v1")
    a("s_and_b32 s41, s20, 1")
    a("s_lshl_b32 s40, s29, 1")
    a("s_add_u32 s40, s40, s41")
    a("s_lshr_b32 s41, s20, 1")
    a("s_lshl_b32 s42, s40, 14")
    a("s_and_b32 s42, s42, 0x1ffff")
    a("s_lshl_b32 s21, s20, 12")
    a("s_add_u32 s22, s22, s21")
    a("s_add_u32 s22, s22, 0x8000")
    a("s_lshl_b32 s31, s28, 5")
    a("s_add_u32 s31, s31, s29")
    a("s_lshl_b32 s31, s31, 16")
    a("s_lshl_b32 s30, s20, 14")
    a("s_add_u32 s31, s31, s30")
    a("s_add_u32 s32, s31, 4096"); a("s_add_u32 s33, s31, 8192"); a("s_add_u32 s34, s31, 12288")
    a("v_and_b32 v5, 15, v0")
    a("v_lshrrev_b32 v6, 4, v0")
    a("v_lshlrev_b32 v4, 8, v5")
    a("v_lshl_add_u32 v4, v6, 4, v4")
    a("s_lshl_b32 s30, s28, 20")
    a("s_mov_b32 s25, 0x100000")
    a("s_mov_b32 s24, 0")
    a("s_mov_b32 s35, 0")
    a("s_mov_b32 s43, 0")
    a(f"s_mov_b32 s71, {f2u(CSCALE):#x}")
    a("s_waitcnt lgkmcnt(0)")
    stamp(P, opt, 6)
    srd(P, 8, 80, 81, 16 << 20)
    a("s_add_u32 s12, s98, s30"); a("s_addc_u32 s13, s99, 0"); a("s_mov_b32 s14, 0x100000"); a("s_mov_b32 s15, 0x20000")
    a("s_mov_b32 s26, s98"); a("s_mov_b32 s27, s99")
    srd(P, 4, 96, 97, 256)
    a("s_or_b32 s38, s38, 32")
    a("v_mov_b32 v56, s38"); a("v_mov_b32 v57, s39"); a("v_mov_b32 v58, 0"); a("v_mov_b32 v59, 0")
    a("v_mov_b32 v60, s38"); a("v_mov_b32 v61, s39")
    a("s_lshl_b32 s36, s28, 5")
    a("s_cmp_lg_u32 s20, 0")
    a("s_cbranch_scc1 L_dq")
    a("s_mov_b64 exec, 1")
    a("buffer_atomic_cmpswap_x2 v[56:59], v58, s[4:7], s36 offen sc0 sc1")
    a("s_mov_b64 exec, -1")
    def qloads(qts):
        for qt in qts:
            for ks in range(4):
                a(f"buffer_load_dwordx4 {ar(QF(qt,ks))}, v4, s[8:11], s{31+qt} offen offset:{ks*64}{LD}")
    qlate = 1
    QE = opt.get('qe', 0)
    def q_first(tag):
        if qlate:
            if QE:
                a("s_cmp_eq_u32 s43, 0")
                a(f"s_cbranch_scc1 L_{tag}_q")
                a("s_waitcnt vmcnt(0)")
                a(f"s_branch L_{tag}_go")
                a(f"L_{tag}_q:")
                qloads(range(QE // 4))
            stamp(P, opt, 7)
            a(f"s_waitcnt vmcnt({16+QE})")
            a("s_cmp_lg_u32 s43, 0")
            a(f"s_cbranch_scc1 L_{tag}_go")
            a("v_mov_b32 v62, 0x20000")
            if tag == 'k':
                a("s_cmp_lg_u32 s20, 0")
                a("s_cbranch_scc1 L_k_bar")
                a("v_cmp_eq_u64 vcc, 0, v[56:57]")
                a("s_mov_b64 exec, 1")
                a("v_cndmask_b32 v56, v56, v60, vcc")
                a("v_cndmask_b32 v57, v57, v61, vcc")
                a("ds_write_b64 v62, v[56:57]")
                a("s_mov_b64 exec, -1")
                a("s_waitcnt lgkmcnt(0)")
                a("L_k_bar:")
            if opt.get('fsync', 0):
                a("v_lshlrev_b32 v63, 2, v0")
                a("s_lshl_b32 s78, s20, 8")
                a("s_add_u32 s78, s78, 0x20100")
                a("v_add_u32 v63, s78, v63")
                a("v_mov_b32 v61, 0")
                a("ds_write_b32 v63, v61")
                a("s_waitcnt lgkmcnt(0)")
            a("s_barrier")
            a("ds_read_b64 v[56:57], v62")
            a(f"L_{tag}_go:")
            return
        a("s_cmp_lg_u32 s43, 0")
        a(f"s_cbranch_scc1 L_{tag}_noq")
        qloads((0, 1))
        stamp(P, opt, 7)
        a("s_waitcnt vmcnt(8)")
        a(f"s_branch L_{tag}_go")
        a(f"L_{tag}_noq:")
        a("s_waitcnt vmcnt(0)")
        a(f"L_{tag}_go:")
        stamp(P, opt, 8)
    a("L_dq:")
    a("s_lshl_b32 s36, s40, 14")
    a("s_add_u32 s37, s36, 4096")
    a("s_add_u32 s76, s36, s30")
    a("s_add_u32 s77, s76, 8192")
    a("s_mov_b32 s18, 0x800000"); a("s_mov_b32 s19, 0x20000")
    a("s_mov_b32 s74, 0x8000"); a("s_mov_b32 s75, 0x20000")
    a("s_mov_b32 s6, 0x8000"); a("s_mov_b32 s7, 0x20000")
    a("s_lshl_b32 s78, s28, 12")
    a("s_cmp_lg_u32 s41, 0")
    a("s_cbranch_scc1 L_dq_v")
    a("s_mov_b32 s16, s82"); a("s_mov_b32 s17, s83")
    a("s_mov_b32 s72, s86"); a("s_mov_b32 s73, s87")
    a("s_mov_b32 s4, s88"); a("s_mov_b32 s5, s89")
    a("s_lshr_b32 s79, s40, 2")
    a("s_lshl_b32 s79, s79, 8")
    a("s_add_u32 s78, s78, s79")
    a("v_lshlrev_b32 v7, 4, v6")
    a("v_lshlrev_b32 v8, 9, v5")
    a("v_lshl_add_u32 v8, v6, 5, v8")
    for ks in range(4): a(f"buffer_load_dwordx4 {vr(16+4*ks)}, v7, s[72:75], s78 offen offset:{ks*64}")
    for ks in range(4): a(f"buffer_load_dwordx4 {vr(32+4*ks)}, v7, s[4:7], s78 offen offset:{ks*64}")
    for f in range(8):
        for hh in range(2):
            a(f"buffer_load_dwordx4 {vr(64+8*f+4*hh)}, v8, s[16:19], s{76+f//4} offen offset:{(f%4)*128+hh*16}{LD}")
    q_first("k")
    a("v_add_u32 v9, s42, v1")
    unpack(P, 128, 16, 16); unpack(P, 160, 32, 16)
    if not exact:
        for i in range(32): a(f"v_mul_f32 v{128+i}, s71, v{128+i}")
    for f in range(8):
        b = 64 + 8*f; sc = 128 + 8*(f % 4); zz = 160 + 8*(f % 4)
        if qlate:
            a(f"s_waitcnt vmcnt({14 - 2*f + f + QE})")
            if f == 7: stamp(P, opt, 8)
        for i in range(8): a(f"v_cvt_f32_i32 v{b+i}, v{b+i}")
        for i in range(0, 8, 2): a(pk("v_pk_add_f32", b+i, b+i, zz+i, neg_b=True))
        if exact:
            for i in range(0, 8, 2): round_pair(P, b+i, b+i+1, 48 + i//2)
        for i in range(0, 8, 2): a(pk("v_pk_mul_f32", b+i, b+i, sc+i))
        if exact:
            for i in range(0, 8, 2): round_pair(P, b+i, b+i+1, 48 + i//2)
            for i in range(8): a(f"v_mul_f32 v{b+i}, s71, v{b+i}")
        for i in range(0, 8, 2): a(f"v_cvt_pk_bf16_f32 v{192+4*f+i//2}, v{b+i}, v{b+i+1}")
        a(f"buffer_store_dwordx4 {vr(192+4*f)}, v1, s[12:15], s{36+f//4} offen offset:{(f%4)*1024}{ST}")
        a(f"ds_write_b128 v9, {vr(192+4*f)} offset:{f*1024}")
    a("s_branch L_dq_done")
    a("L_dq_v:")
    a("s_mov_b32 s16, s84"); a("s_mov_b32 s17, s85")
    a("s_mov_b32 s72, s90"); a("s_mov_b32 s73, s91")
    a("s_mov_b32 s4, s92"); a("s_mov_b32 s5, s93")
    a("s_lshl_b32 s79, s40, 6")
    a("s_add_u32 s78, s78, s79")
    a("s_add_u32 s100, s76, 4096"); a("s_add_u32 s101, s77, 4096")
    a("s_add_u32 s36, s36, 8192"); a("s_add_u32 s37, s37, 8192")
    a("v_and_b32 v10, 31, v0")
    a("v_lshrrev_b32 v11, 5, v0")
    a("v_lshlrev_b32 v7, 3, v11")
    a("v_lshlrev_b32 v8, 11, v11")
    a("v_lshl_add_u32 v8, v10, 4, v8")
    for rho in range(2):
        for hh in range(2):
            a(f"buffer_load_dwordx2 {vr(16+4*rho+2*hh,2)}, v7, s[72:75], s78 offen offset:{rho*16+hh*32}")
    for rho in range(2):
        for hh in range(2):
            a(f"buffer_load_dwordx2 {vr(32+4*rho+2*hh,2)}, v7, s[4:7], s78 offen offset:{rho*16+hh*32}")
    for rho in range(2):
        for i in range(8):
            so = (76, 77, 100, 101)[rho*2 + i//4]
            a(f"buffer_load_dwordx4 {vr(64+32*rho+4*i)}, v8, s[16:19], s{so} offen offset:{(i%4)*512}{LD}")
    q_first("v")
    a("v_lshrrev_b32 v7, 3, v10")
    a("v_lshlrev_b32 v9, 11, v7")
    a("v_and_b32 v7, 1, v10")
    a("v_lshl_add_u32 v9, v7, 10, v9")
    a("v_lshl_add_u32 v9, v11, 8, v9")
    a("v_bfe_u32 v7, v10, 1, 2")
    a("v_lshl_add_u32 v9, v7, 6, v9")
    a("v_add_u32 v9, s42, v9")
    a("v_add_u32 v10, s42, v1")
    unpack(P, 128, 16, 8); unpack(P, 160, 32, 8)
    for rho in range(2):
        b = 64 + 32*rho
        for i in range(32):
            if qlate and i % 8 == 0:
                a(f"s_waitcnt vmcnt({14 - 8*rho - i//4 + QE})")
                if rho == 1 and i == 24: stamp(P, opt, 8)
            a(f"v_cvt_f32_i32 v{b+i}, v{b+i}")
        for i in range(8):
            for rr in (0, 2): a(pk("v_pk_add_f32", b+4*i+rr, b+4*i+rr, 160+8*rho+i, bsel=1, neg_b=True))
        if exact:
            for i in range(8):
                for rr in (0, 2): round_pair(P, b+4*i+rr, b+4*i+rr+1, 48 + (2*i + rr//2) % 8)
        for i in range(8):
            for rr in (0, 2): a(pk("v_pk_mul_f32", b+4*i+rr, b+4*i+rr, 128+8*rho+i, bsel=1))
        for rr in range(4):
            o = 192 + 16*rho + 4*rr
            for i in range(0, 8, 2): a(f"v_cvt_pk_bf16_f32 v{o+i//2}, v{b+4*i+rr}, v{b+4*(i+1)+rr}")
            a(f"ds_write_b128 v9, {vr(o)} offset:{8192 + rho*512 + rr*16}")
    a("s_waitcnt lgkmcnt(0)")
    for f in range(8): a(f"ds_read_b128 {vr(64+4*f)}, v10 offset:{8192 + f*1024}")
    for f in range(8):
        a(f"s_waitcnt lgkmcnt({7-f})")
        a(f"buffer_store_dwordx4 {vr(64+4*f)}, v1, s[12:15], s{36+f//4} offen offset:{(f%4)*1024}{ST}")
    a("L_dq_done:")
    stamp(P, opt, 11)
    a("s_cmp_lg_u32 s43, 0")
    a("s_cbranch_scc1 L_redo_next")
    qloads(range(QE // 4, 4))
    stamp(P, opt, 12)
    for i in range(128, 256): a(f"v_mov_b32 v{i}, 0")
    a("s_add_u32 s4, s98, 0x800000"); a("s_addc_u32 s5, s99, 0"); a("s_mov_b32 s6, 0x4000"); a("s_mov_b32 s7, 0x20000")
    a("s_getreg_b32 s79, hwreg(HW_REG_XCC_ID, 0, 4)")
    a("s_or_b32 s79, s79, 16")
    a("s_lshl_b32 s76, s28, 10")
    a("s_lshl_b32 s77, s29, 2")
    a("s_add_u32 s77, s77, s20")
    a("s_lshl_b32 s77, s77, 3")
    a("s_add_u32 s77, s77, s76")
    a("s_add_u32 s100, s76, 8192"); a("s_add_u32 s101, s77, 8192")
    a("v_mov_b32 v9, 0")
    a("s_mov_b32 s78, 0")
    a("s_waitcnt lgkmcnt(0)")
    a("v_and_b32 v56, 0xffffffe0, v56")
    a("v_mov_b32 v59, v57")
    a("v_or_b32 v58, s79, v56")
    a("v_or_b32 v56, 15, v56")
    a(f"s_waitcnt vmcnt({16-QE})")
    stamp(P, opt, 9)
    a("s_mov_b64 exec, 1")
    a("buffer_store_dwordx2 v[58:59], v9, s[4:7], s77 offen")
    a("s_mov_b64 exec, -1")
    a("L_poll:")
    a("buffer_load_dwordx4 v[8:11], v1, s[4:7], s76 offen sc1")
    a("s_waitcnt vmcnt(0)")
    a("v_cmp_ne_u64 vcc, v[58:59], v[8:9]")
    a("v_cmp_ne_u64 s[72:73], v[58:59], v[10:11]")
    a("s_or_b64 vcc, vcc, s[72:73]")
    a("s_cbranch_scc0 L_go")
    a("s_sleep 2")
    a("s_add_u32 s78, s78, 1")
    a(f"s_cmp_lt_u32 s78, {opt.get('fastpolls', 48)}")
    a("s_cbranch_scc1 L_poll")
    a("s_lshl_b32 s79, s41, 13")
    a("s_add_u32 s79, s79, s42")
    a("v_add_u32 v10, s79, v1")
    for f in range(8): a(f"ds_read_b128 {vr(64+4*f)}, v10 offset:{f*1024}")
    a("s_waitcnt lgkmcnt(0)")
    for f in range(8): a(f"buffer_store_dwordx4 {vr(64+4*f)}, v1, s[12:15], s{36+f//4} offen offset:{(f%4)*1024} sc1")
    a("v_mov_b32 v9, 0")
    a("s_waitcnt vmcnt(0)")
    a("s_mov_b64 exec, 1")
    a("buffer_store_dwordx2 v[56:57], v9, s[4:7], s101 offen sc1")
    a("s_mov_b64 exec, -1")
    a("s_mov_b32 s78, 0")
    a("L_poll2:")
    a("buffer_load_dwordx4 v[8:11], v1, s[4:7], s76 offen sc1")
    a("buffer_load_dwordx4 v[60:63], v1, s[4:7], s100 offen sc1")
    a("s_waitcnt vmcnt(0)")
    a("v_cmp_ne_u64 vcc, v[58:59], v[8:9]")
    a("v_cmp_ne_u64 s[72:73], v[56:57], v[60:61]")
    a("s_and_b64 s[74:75], vcc, s[72:73]")
    a("v_cmp_ne_u64 vcc, v[58:59], v[10:11]")
    a("v_cmp_ne_u64 s[72:73], v[56:57], v[62:63]")
    a("s_and_b64 vcc, vcc, s[72:73]")
    a("s_or_b64 vcc, vcc, s[74:75]")
    a("s_cbranch_scc0 L_go")
    a("s_sleep 8")
    a("s_add_u32 s78, s78, 1")
    a(f"s_cmp_lt_u32 s78, {opt.get('slowpolls', 2048)}")
    a("s_cbranch_scc1 L_poll2")
    a("s_mov_b32 s43, 1")
    a("s_mov_b32 s40, 0")
    a("s_mov_b32 s41, 0")
    a("s_lshl_b32 s42, s20, 13")
    a("s_add_u32 s42, s42, 0x1e000")
    a("v_and_b32 v5, 15, v0")
    a("v_lshrrev_b32 v6, 4, v0")
    a("s_branch L_redo_k")
    a("L_redo_next:")
    a("s_waitcnt vmcnt(0) lgkmcnt(0)")
    a("s_xor_b32 s41, s41, 1")
    a("s_cmp_lg_u32 s41, 0")
    a("s_cbranch_scc1 L_redo_v")
    a("s_add_u32 s40, s40, 1")
    a("s_cmp_ge_u32 s40, 64")
    a("s_cbranch_scc1 L_redo_end")
    a("L_redo_k:")
    a("s_add_u32 s42, s42, 0x2000")
    a("s_branch L_dq")
    a("L_redo_v:")
    a("s_sub_u32 s42, s42, 0x2000")
    a("s_branch L_dq")
    a("L_redo_end:")
    for i in range(128, 224): a(f"v_mov_b32 v{i}, 0")
    a("L_go:")
    sum_init(P, msum)
    srd(P, 16, 94, 95, 16 << 20)
    stamp(P, opt, 1)
    for st in range(2, 6):
        if st == 3: pass
        if st > 2: a("s_add_u32 s22, s22, 0x4000")
        a("s_and_b32 s23, s22, 0xfffff")
        a("s_and_b32 m0, s22, 0x1ffff")
        a("s_nop 0")
        for k in range(4 if st < 5 else 2): a(f"buffer_load_dwordx4 v1, s[12:15], s23 offen offset:{k*1024} sc1 lds")
        if st == 2:
            a("s_barrier")
            for f in range(8): a(f"ds_read_b128 {ar(FR(f))}, v3 offset:{f*1024}")
    stamp(P, opt, 10)
    return P

def generate2(opt):
    import gen
    full = main_kernel(opt, fused_prologue(opt))
    hdr = open(f"cdna_kernels/{NAME}.s.ref").read().split("; Override launch")[0]
    out = hdr
    out += "; One launch: every workgroup dequantises 64 keys of its KV head into d_ws (MFMA fragment order, bf16), then flash attention.\n"
    out += f"; @launch grid=(256,1,1) block=(256,1,1) lds=163840\n"
    out += '.amdgcn_target "amdgcn-amd-amdhsa--gfx950"\n.text\n'
    out += f".globl {KMAIN}\n.p2align 8\n.type {KMAIN},@function\n{KMAIN}:\n" + fmt(full)
    out += '.section .rodata,"a"\n' + kd(KMAIN, 392, 256, 102)
    return out

if __name__ == "__main__":
    opt = {}
    path = f"cdna_kernels/{NAME}.s"
    for x in sys.argv[1:]:
        if x.startswith("-o"): path = x[2:]
        else:
            k, v = x.split("=")
            opt[k] = (" " + v.replace("+", " ")).rstrip() if k == 'dmaflag' else int(v)
    opt['fused'] = 1
    open(path, "w").write(generate2(opt))
    print("wrote", path)
```

```python
import sys
import gen
from gen import *
from gen2 import pk

LINK = "s[64:65]"
def call(lbl): return f"s_call_b64 {LINK}, {lbl}"
class Ctx: pass

def mkstamp(opt):
    mode = opt.get('stamp', 0)
    cols = {0: [], 1: [0, 6, 9, 1, 10, 2, 3, 5], 3: [0, 2, 3, 5, 11, 12], 4: [0, 7, 8, 9, 1, 10, 2, 5]}[mode]
    def st(L, k):
        if k in cols: L.append(f"s_memrealtime s[{44+2*cols.index(k)}:{45+2*cols.index(k)}]")
        if mode == 3 and k == 2: L.append(f"s_memtime s[{44+2*cols.index(11)}:{45+2*cols.index(11)}]")
        if mode == 3 and k == 3: L.append(f"s_memtime s[{44+2*cols.index(12)}:{45+2*cols.index(12)}]")
    def store(L):
        if not mode: return
        a = L.append
        a("s_waitcnt lgkmcnt(0)")
        a("s_lshl_b32 s77, s2, 2"); a("s_add_u32 s77, s77, s20"); a("s_lshl_b32 s76, s77, 7")
        a("s_add_u32 s72, s26, 0x1000000"); a("s_addc_u32 s73, s27, 0"); a("s_mov_b32 s74, 0x100000"); a("s_mov_b32 s75, 0x20000")
        a("v_mov_b32 v5, 0"); a("s_mov_b64 exec, 1")
        for c in range(13):
            n = cols.index(c) if c in cols else 0
            a(f"v_mov_b32 v6, s{44+2*n}"); a(f"v_mov_b32 v7, s{45+2*n}")
            a(f"buffer_store_dwordx2 v[6:7], v5, s[72:75], s76 offen offset:{8*c}")
            a("s_waitcnt vmcnt(0)")
    return st, store

def unit_setup(L):
    a = L.append
    a("L_usetup:")
    a("s_lshl_b32 s39, s22, 14")
    a("s_lshl_b32 s3, s23, 11")
    a("s_add_u32 s36, s39, s3")
    a("s_add_u32 s36, s36, s30")
    a("s_add_u32 s37, s36, 8192")
    a("s_lshl_b32 s38, s28, 12")
    a("s_mov_b32 s10, 0x800000"); a("s_mov_b32 s11, 0x20000")
    a("s_mov_b32 s74, 0x8000"); a("s_mov_b32 s75, 0x20000")
    a("s_mov_b32 s78, 0x8000"); a("s_mov_b32 s79, 0x20000")
    a("s_cmp_lg_u32 s41, 0")
    a("s_cbranch_scc1 L_usetup_v")
    a("s_mov_b32 s8, s82"); a("s_mov_b32 s9, s83")
    a("s_mov_b32 s72, s86"); a("s_mov_b32 s73, s87")
    a("s_mov_b32 s76, s88"); a("s_mov_b32 s77, s89")
    a("s_lshr_b32 s3, s22, 2"); a("s_lshl_b32 s3, s3, 8"); a("s_add_u32 s38, s38, s3")
    a("s_lshl_b32 s3, s23, 6"); a("s_add_u32 s39, s39, s3")
    a("s_add_u32 s40, s39, 4096")
    a("v_and_b32 v12, 3, v0"); a("v_bfe_u32 v13, v0, 2, 2"); a("v_lshrrev_b32 v14, 4, v0")
    a("v_lshlrev_b32 v10, 9, v12"); a("v_lshl_add_u32 v10, v14, 7, v10"); a("v_lshl_add_u32 v10, v13, 5, v10")
    a("v_lshlrev_b32 v5, 10, v14"); a("v_lshl_add_u32 v5, v13, 8, v5"); a("v_lshl_add_u32 v5, v12, 4, v5")
    a(f"s_setpc_b64 {LINK}")
    a("L_usetup_v:")
    a("s_mov_b32 s8, s84"); a("s_mov_b32 s9, s85")
    a("s_mov_b32 s72, s90"); a("s_mov_b32 s73, s91")
    a("s_mov_b32 s76, s92"); a("s_mov_b32 s77, s93")
    a("s_lshl_b32 s3, s22, 6"); a("s_add_u32 s38, s38, s3")
    a("s_lshl_b32 s3, s23, 3"); a("s_add_u32 s38, s38, s3")
    a("s_lshl_b32 s3, s23, 8"); a("s_add_u32 s39, s39, s3"); a("s_add_u32 s39, s39, 8192")
    a("v_and_b32 v12, 31, v0"); a("v_lshrrev_b32 v13, 5, v0")
    a("v_lshlrev_b32 v10, 13, v13"); a("v_lshl_add_u32 v10, v12, 4, v10")
    a("v_lshrrev_b32 v14, 3, v12"); a("v_lshlrev_b32 v5, 11, v14")
    a("v_and_b32 v14, 1, v12"); a("v_lshl_add_u32 v5, v14, 10, v5")
    a("v_bfe_u32 v14, v12, 1, 2"); a("v_lshl_add_u32 v5, v14, 6, v5")
    a("v_lshl_add_u32 v5, v13, 5, v5")
    a(f"s_setpc_b64 {LINK}")

SCHED = [0]
def unit_load(L, LD):
    a = L.append
    a("L_uload:")
    a("s_cmp_lg_u32 s41, 0")
    a("s_cbranch_scc1 L_uload_v")
    a("v_bfe_u32 v12, v10, 1, 8")
    a("buffer_load_dwordx4 v[56:59], v12, s[72:75], s38 offen")
    a("buffer_load_dwordx4 v[60:63], v12, s[76:79], s38 offen")
    for kt in range(2):
        for hh in range(2): a(f"buffer_load_dwordx4 {vr(16+8*kt+4*hh)}, v10, s[8:11], s{36+kt} offen offset:{hh*16}{LD}")
    a("s_branch L_uload_e")
    a("L_uload_v:")
    a("v_lshrrev_b32 v12, 8, v10")
    a("v_and_b32 v12, 32, v12")
    a("buffer_load_dwordx2 v[56:57], v12, s[72:75], s38 offen")
    a("buffer_load_dwordx2 v[58:59], v12, s[76:79], s38 offen")
    for i in range(4): a(f"buffer_load_dwordx4 {vr(16+4*i)}, v10, s[8:11], s36 offen offset:{i*512}{LD}")
    a("L_uload_e:")
    a("s_add_u32 s36, s36, 0x40000"); a("s_add_u32 s37, s37, 0x40000"); a("s_add_u32 s38, s38, 1024")
    if SCHED[0] == 0:
        a("s_cmp_eq_u32 s24, 2")
        a("s_cbranch_scc1 L_flag_n")
    a(f"s_setpc_b64 {LINK}")

def early_code(L, LD, asym, part=None):
    a = L.append
    if part is not None:
        full = []; early_code(full, LD, asym)
        k = full.index(call("L_uload")) + 1
        if part == 0: L += full[:k] + ["s_branch L_early_2"]
        else: L += ["L_early_2:"] + full[k:]
        return
    a("L_early:")
    if not asym:
        a("s_and_b32 s22, s20, 1"); a("s_lshl_b32 s22, s22, 3"); a("s_lshr_b32 s3, s29, 2"); a("s_add_u32 s22, s22, s3")
        a("s_and_b32 s23, s29, 3")
        a(call("L_usetup")); a(call("L_uload")); a("s_waitcnt vmcnt(0)"); a(call("L_uproc"))
        a("s_setpc_b64 s[66:67]")
        return
    a("s_lshr_b32 s22, s29, 2"); a("s_and_b32 s23, s29, 3")
    a(call("L_usetup"))
    a(call("L_uload"))
    a("s_sub_u32 s3, s36, 0x20000"); a("s_sub_u32 s68, s37, 0x20000"); a("s_sub_u32 s69, s38, 512")
    a("s_cmp_lg_u32 s41, 0")
    a("s_cbranch_scc1 L_early_v")
    a("buffer_load_dwordx4 v[64:67], v12, s[72:75], s69 offen")
    a("buffer_load_dwordx4 v[68:71], v12, s[76:79], s69 offen")
    for kt in range(2):
        for hh in range(2): a(f"buffer_load_dwordx4 {vr(32+8*kt+4*hh)}, v10, s[8:11], s{(3, 68)[kt]} offen offset:{hh*16}{LD}")
    a("s_branch L_early_w")
    a("L_early_v:")
    a("buffer_load_dwordx2 v[64:65], v12, s[72:75], s69 offen")
    a("buffer_load_dwordx2 v[66:67], v12, s[76:79], s69 offen")
    for i in range(4): a(f"buffer_load_dwordx4 {vr(32+4*i)}, v10, s[8:11], s3 offen offset:{i*512}{LD}")
    a("L_early_w:")
    a("s_cmp_lg_u32 s42, 0")
    a("s_cbranch_scc1 L_early_x")
    a("s_barrier")
    a("L_early_x:")
    a("s_waitcnt vmcnt(6)")
    a(call("L_uproc"))
    a("s_sub_u32 s39, s39, 0x20000"); a("s_sub_u32 s40, s40, 0x20000")
    a("s_waitcnt vmcnt(2)")
    for i in range(0, 16, 2): a(f"v_pk_mov_b32 {vr(16+i,2)}, {vr(32+i,2)}, {vr(32+i,2)} op_sel:[0,1]")
    for i in range(0, 8, 2): a(f"v_pk_mov_b32 {vr(56+i,2)}, {vr(64+i,2)}, {vr(64+i,2)} op_sel:[0,1]")
    a(call("L_uproc"))
    a("s_sub_u32 s39, s39, 0x20000"); a("s_sub_u32 s40, s40, 0x20000")
    a("s_setpc_b64 s[66:67]")

def unit_proc(L, exact):
    a = L.append; T0 = 12
    a("L_uproc:")
    for i in range(16): a(f"v_cvt_f32_i32 v{16+i}, v{16+i}")
    a("s_cmp_lg_u32 s41, 0")
    a("s_cbranch_scc1 L_uproc_v")
    for j in range(4):
        a(f"v_lshlrev_b32 v{T0}, 16, v{60+j}"); a(f"v_and_b32 v{T0+1}, 0xffff0000, v{60+j}")
        a(f"v_lshlrev_b32 v{T0+2}, 16, v{56+j}"); a(f"v_and_b32 v{T0+3}, 0xffff0000, v{56+j}")
        for c in range(2): a(pk("v_pk_add_f32", 16+8*c+2*j, 16+8*c+2*j, T0, neg_b=True))
        if not exact: a(f"v_pk_mul_f32 {vr(T0+2,2)}, {vr(T0+2,2)}, s[70:71]")
        if exact:
            for c in range(2): round_pair(L, 16+8*c+2*j, 17+8*c+2*j, 60+j)
        for c in range(2): a(pk("v_pk_mul_f32", 16+8*c+2*j, 16+8*c+2*j, T0+2))
        if exact:
            for c in range(2):
                b = 16 + 8*c + 2*j
                round_pair(L, b, b+1, 60+j)
                a(f"v_pk_mul_f32 {vr(b,2)}, {vr(b,2)}, s[70:71]")
        for c in range(2): a(f"v_cvt_pk_bf16_f32 v{16+8*c+j}, v{16+8*c+2*j}, v{17+8*c+2*j}")
    a("s_cmp_lg_u32 s42, 0")
    a("s_cbranch_scc1 L_uproc_km")
    a("buffer_store_dwordx4 v[16:19], v5, s[12:15], s39 offen")
    a("buffer_store_dwordx4 v[24:27], v5, s[12:15], s40 offen")
    a("s_branch L_uproc_e")
    a("L_uproc_km:")
    a("buffer_store_dwordx4 v[16:19], v5, s[12:15], s39 offen sc1")
    a("buffer_store_dwordx4 v[24:27], v5, s[12:15], s40 offen sc1")
    a("s_branch L_uproc_e")
    a("L_uproc_vm:")
    a("buffer_store_dwordx4 v[56:59], v5, s[12:15], s39 offen sc1")
    a("buffer_store_dwordx4 v[60:63], v5, s[12:15], s39 offen offset:16 sc1")
    a("s_branch L_uproc_e")
    a("L_uproc_v:")
    for j in range(2):
        a(f"v_lshlrev_b32 v{60+2*j}, 16, v{58+j}"); a(f"v_and_b32 v{61+2*j}, 0xffff0000, v{58+j}")
        a(f"v_lshlrev_b32 v{T0+2*j}, 16, v{56+j}"); a(f"v_and_b32 v{T0+1+2*j}, 0xffff0000, v{56+j}")
    for i in range(4):
        for rr in (0, 2): a(pk("v_pk_add_f32", 16+4*i+rr, 16+4*i+rr, 60+i, bsel=1, neg_b=True))
    if exact:
        for i in range(4):
            for rr in (0, 2): round_pair(L, 16+4*i+rr, 17+4*i+rr, 56 + rr//2)
    for i in range(4):
        for rr in (0, 2): a(pk("v_pk_mul_f32", 16+4*i+rr, 16+4*i+rr, T0+i, bsel=1))
    for rr in range(4):
        o = (56, 60, 58, 62)[rr]
        a(f"v_cvt_pk_bf16_f32 v{o}, v{16+rr}, v{20+rr}")
        a(f"v_cvt_pk_bf16_f32 v{o+1}, v{24+rr}, v{28+rr}")
    a("s_cmp_lg_u32 s42, 0")
    for x in (56, 57, 60, 61): a(f"v_permlane32_swap_b32 v{x}, v{x+2}")
    a("s_cbranch_scc1 L_uproc_vm")
    a("buffer_store_dwordx4 v[56:59], v5, s[12:15], s39 offen")
    a("buffer_store_dwordx4 v[60:63], v5, s[12:15], s39 offen offset:16")
    a("L_uproc_e:")
    a("s_add_u32 s39, s39, 0x40000"); a("s_add_u32 s40, s40, 0x40000")
    a("s_cmp_eq_u32 s24, 1" if SCHED[0] else "s_bitcmp1_b32 6, s24")
    a("s_cbranch_scc1 L_uload")
    a(f"s_setpc_b64 {LINK}")

def flag_code(L):
    a = L.append
    a("L_flag_n:")
    a("s_add_u32 s101, s101, 0x4000")
    a("L_flag:")
    a("v_mov_b32 v12, s62"); a("v_mov_b32 v13, s63"); a("v_mov_b32 v14, 0")
    a("s_mov_b64 exec, 1")
    a("buffer_store_dwordx2 v[12:13], v14, s[4:7], s101 offen")
    a("s_cmp_eq_u32 s42, 0")
    a("s_cbranch_scc1 L_flag_e")
    a("v_mov_b32 v15, 0x2000")
    a("v_or_b32 v13, 0xf0000000, v13")
    a("buffer_store_dwordx2 v[12:13], v15, s[4:7], s101 offen sc1")
    a("L_flag_e:")
    a("s_mov_b64 exec, -1")
    a(f"s_setpc_b64 {LINK}")

def window(L, r, dst, lo="s[60:61]"):
    a = L.append
    l0, l1 = lo[2:-1].split(":")
    a(f"v_subrev_co_u32 v{r}, vcc, s{l0}, v{r}")
    a(f"v_mov_b32 v15, s{l1}")
    a(f"v_subb_co_u32 v{r+1}, vcc, v{r+1}, v15, vcc")
    a(f"v_lshrrev_b32 v{r}, 24, v{r}")
    a(f"v_or_b32 v{r}, v{r}, v{r+1}")

def probe_check(L):
    window(L, 56, None); window(L, 58, None)
    L.append("v_or_b32 v56, v56, v58")
    L.append("v_cmp_ne_u32 vcc, 0, v56")
    L.append("s_cmp_lg_u64 vcc, 0")

def poll_code(L, opt):
    a = L.append
    a("L_poll:")
    a("s_mov_b32 s21, 0")
    a("s_mov_b32 s68, s60"); a("s_or_b32 s69, s61, 0xf0000000")
    a("L_poll_l:")
    a("s_add_u32 s3, s100, 0x2000")
    a("buffer_load_dwordx4 v[56:59], v1, s[4:7], s100 offen sc1")
    a("buffer_load_dwordx4 v[60:63], v1, s[4:7], s3 offen sc1")
    a("s_waitcnt vmcnt(0)")
    window(L, 56, None); window(L, 58, None); window(L, 60, None, "s[68:69]"); window(L, 62, None, "s[68:69]")
    a("v_min_u32 v56, v56, v60")
    a("v_min_u32 v58, v58, v62")
    a("v_min_u32 v60, v60, v62")
    a("v_or_b32 v56, v56, v58")
    a("v_cmp_ne_u32 vcc, 0, v56")
    a("v_cmp_eq_u32 s[96:97], 0, v60")
    a("s_cmp_lg_u64 vcc, 0")
    a("s_cbranch_scc0 L_poll_e")
    a("s_add_u32 s21, s21, 1")
    a("s_or_b32 s3, s42, s24")
    a("s_cmp_lg_u32 s3, 0")
    a("s_cbranch_scc1 L_poll_w")
    a("s_cmp_lg_u64 s[96:97], 0")
    a("s_cselect_b32 s3, 0x7fffffff, s21")
    a(f"s_cmp_lt_u32 s3, {opt.get('fastpolls', 12)}")
    a("s_cbranch_scc1 L_poll_w")
    a("s_mov_b32 s42, 1")
    a(f"s_mov_b64 s[98:99], {LINK}")
    if opt.get('asym', 0):
        a("s_bitcmp1_b32 s20, 0")
        a("s_cbranch_scc1 L_poll_f")
    a("s_call_b64 s[66:67], L_early")
    a("s_mov_b32 s68, s60"); a("s_or_b32 s69, s61, 0xf0000000")
    a("s_waitcnt vmcnt(0)")
    a("L_poll_f:")
    a(call("L_flag"))
    a(f"s_mov_b64 {LINK}, s[98:99]")
    a("L_poll_w:")
    a("s_sleep 1")
    a("s_cmp_lt_u32 s21, s25")
    a("s_cbranch_scc1 L_poll_l")
    a("s_cmp_eq_u32 s21, s21")
    a("L_poll_e:")
    a(f"s_setpc_b64 {LINK}")


def build(opt):
    opt['msum'] = msum = 4; opt['fsync'] = 1; opt['fused'] = 1; opt['hooks'] = 1
    gen.SWAP_EVEN[0] = 1
    SCHED[0] = sched = opt.get('sched', 0)
    opt.setdefault('wb', 31)
    opt['hmask'] = (0x3e if sched else 0xc3e) | ((1 << opt['wb']) if opt['wb'] > 5 else 0)
    exact = opt.get('exact', 0)
    LD = " nt" if opt.get('ldnt', 0) else ""
    st, st_store = mkstamp(opt)
    P = []; a = P.append
    a("s_cmp_ge_u32 s2, 256")
    a("s_cbranch_scc1 L_end")
    st(P, 0)
    a("s_load_dwordx16 s[80:95], s[0:1], 0")
    a("s_load_dwordx4 s[96:99], s[0:1], 64")
    a("s_memrealtime s[62:63]")
    a("v_lshrrev_b32 v5, 6, v0")
    a("v_and_b32 v0, 63, v0")
    a("v_readfirstlane_b32 s20, v5")
    a("v_lshlrev_b32 v1, 4, v0")
    a("s_and_b32 s28, s2, 7")
    a("s_lshr_b32 s29, s2, 3")
    a("s_lshl_b32 s30, s28, 20")
    a("s_lshr_b32 s41, s20, 1")
    a(f"s_mov_b32 s70, {f2u(CSCALE):#x}"); a("s_mov_b32 s71, s70")
    a("s_getreg_b32 s21, hwreg(HW_REG_XCC_ID, 0, 4)")
    a("s_mov_b32 s43, 0"); a("s_mov_b32 s24, 0"); a("s_mov_b32 s42, 0")
    a("s_lshl_b32 s31, s28, 5"); a("s_add_u32 s31, s31, s29"); a("s_lshl_b32 s31, s31, 16")
    a("s_lshl_b32 s3, s20, 14"); a("s_add_u32 s31, s31, s3")
    a("s_add_u32 s32, s31, 4096"); a("s_add_u32 s33, s31, 8192"); a("s_add_u32 s34, s31, 12288")
    a("v_and_b32 v6, 15, v0"); a("v_lshrrev_b32 v7, 4, v0")
    a("v_lshlrev_b32 v4, 8, v6"); a("v_lshl_add_u32 v4, v7, 4, v4")
    a("s_waitcnt lgkmcnt(0)")
    st(P, 6)
    def qloads(qts):
        for qt in qts:
            for ks in range(4): a(f"buffer_load_dwordx4 {ar(QF(qt,ks))}, v4, s[16:19], s{31+qt} offen offset:{ks*64}{LD}")
    a("s_add_u32 s12, s98, s30"); a("s_addc_u32 s13, s99, 0"); a("s_mov_b32 s14, 0x100000"); a("s_mov_b32 s15, 0x20000")
    srd(P, 16, 80, 81, 16 << 20)
    a("s_mov_b32 s26, s98"); a("s_mov_b32 s27, s99")
    a("s_add_u32 s4, s98, 0x800000"); a("s_addc_u32 s5, s99, 0"); a("s_mov_b32 s6, 0xc000"); a("s_mov_b32 s7, 0x20000")
    if opt.get('tlb', 0):
        a("v_mov_b32 v40, 0")
        a("s_mov_b64 exec, 1")
        a("buffer_load_dword v41, v40, s[12:15], 0 offen")
        a("buffer_load_dword v42, v40, s[4:7], 0 offen")
        a("buffer_load_dword v43, v40, s[16:19], s31 offen")
        if opt['tlb'] > 1:
            srd(P, 8, 94, 95, 16 << 20)
            a("buffer_load_dword v44, v40, s[8:11], s31 offen")
        a("s_mov_b64 exec, -1")
    if opt.get('asym', 0):
        if opt.get('lay', 1):
            a("s_bitcmp1_b32 s20, 0")
            a("s_cbranch_scc1 L_oddw")
            a("s_call_b64 s[66:67], L_early")
            if opt.get('bar2', 0): a("s_barrier")
            a("s_branch L_odd")
            early_code(P, LD, 1, part=0); unit_setup(P); unit_load(P, LD); early_code(P, LD, 1, part=1); unit_proc(P, exact); flag_code(P)
            a("L_oddw:")
            a("s_lshr_b32 s22, s29, 2"); a("s_add_u32 s22, s22, 24"); a("s_and_b32 s23, s29, 3")
            a(call("L_usetup"))
            a("s_barrier")
            if opt.get('bar2', 0):
                qloads(range(opt['bar2']))
                a("s_barrier")
                qloads(range(opt['bar2'], opt.get('qa', 2)))
                a("s_branch L_odd2")
            a("L_odd:")
        else:
            a("s_bitcmp1_b32 s20, 0")
            a("s_cbranch_scc0 L_even")
            a("s_lshr_b32 s22, s29, 2"); a("s_add_u32 s22, s22, 24"); a("s_and_b32 s23, s29, 3")
            a(call("L_usetup"))
            a("s_barrier")
            a("s_branch L_odd")
            a("L_even:")
            a("s_call_b64 s[66:67], L_early")
            st(P, 8)
            a("L_odd:")
    else:
        a("s_call_b64 s[66:67], L_early")
        st(P, 8)
    skew = opt.get('skew', 0)
    rest = []
    NE = 4
    if skew:
        a("v_lshlrev_b32 v6, 2, v0"); a("v_add_u32 v6, 0x20100, v6")
        a("v_and_b32 v8, 3, v0"); a("v_lshl_add_u32 v8, v8, 8, v6")
        a("s_lshl_b32 s3, s20, 8"); a("v_add_u32 v6, s3, v6")
        a("v_mov_b32 v7, 0")
        a("ds_write_b32 v6, v7")
        a("s_waitcnt lgkmcnt(0)")
        a("s_barrier")
        a("s_cmp_lg_u32 s41, 0")
        a("s_cbranch_scc1 L_noq")
        qloads(range(4))
        a("L_noq:")
        a("s_mov_b32 s35, 0"); a(f"s_mov_b32 s25, {opt.get('slowpolls', 2048)}")
        a("s_lshl_b32 s100, s28, 10")
        a("s_lshl_b32 s101, s29, 2"); a("s_add_u32 s101, s101, s20"); a("s_lshl_b32 s101, s101, 3"); a("s_add_u32 s101, s101, s100")
        a("s_add_u32 s21, s21, 1"); a("s_lshl_b32 s21, s21, 28"); a("s_and_b32 s63, s63, 0x0fffffff"); a("s_or_b32 s63, s63, s21")
        a("s_sub_u32 s60, s62, 2000"); a("s_subb_u32 s61, s63, 0")
        a("s_cmp_lg_u32 s41, 0")
        a("s_cbranch_scc1 L_w0")
        a("s_waitcnt vmcnt(16)")
        a("s_branch L_w1")
        a("L_w0:")
        a("s_waitcnt vmcnt(0)")
        a("L_w1:")
        st(P, 9)
        a(call("L_flag"))
        a("s_cmp_eq_u32 s41, 0")
        a("s_cbranch_scc1 L_noq2")
        qloads(range(opt.get('ql1', 2)))
        a("L_noq2:")
        a("v_mov_b32 v3, v1")
        for i in range(128, 256): a(f"v_mov_b32 v{i}, 0")
        sum_init(P, msum)
        a("v_lshrrev_b32 v7, 1, v0"); a("v_and_b32 v7, 1, v7"); a("v_sub_u32 v15, 2, v7")
        a("v_mov_b32 v7, 1"); a("s_cmp_eq_u32 s41, 0"); a("s_cselect_b64 vcc, -1, 0"); a("v_cndmask_b32 v7, v7, v15, vcc")
        a("v_mov_b32 v2, v15")
        a("buffer_load_dwordx4 v[56:59], v1, s[4:7], s100 offen sc1")
        a("s_waitcnt vmcnt(0)")
        probe_check(P)
        a("s_cbranch_scc0 L_go")
        a(call("L_poll"))
        a("s_cbranch_scc1 L_redo")
        a("L_go:")
        st(P, 1)
        a("s_mov_b32 s25, 0x100000")
        a("s_lshl_b32 s22, s20, 12")
        def grp(first, n):
            r = [] if first else ["s_add_u32 s22, s22, 0x4000"]
            return r + ["s_and_b32 m0, s22, 0x1ffff", "s_nop 0"] + [f"buffer_load_dwordx4 v1, s[12:15], s22 offen offset:{k*1024} sc1 lds" for k in range(n)]
        a("s_cmp_lg_u32 s41, 0")
        a("s_cbranch_scc1 L_go_v")
        for t in range(2): P += grp(t == 0, 4)
        a("s_waitcnt vmcnt(0)")
        a("ds_write_b32 v6, v7")
        a("s_branch L_go_j")
        a("L_go_v:")
        P += grp(True, 4)
        q1 = opt.get('ql1', 2)
        qloads(range(q1, q1 + 1))
        a("s_waitcnt vmcnt(4)")
        a("ds_write_b32 v6, v7")
        qloads(range(q1 + 1, 4))
        for t in (1, 2): P += grp(False, 4)
        a("s_waitcnt vmcnt(8)")
        a("L_go_j:")
        srd(P, 16, 94, 95, 16 << 20)
        a("v_mov_b32 v12, v2")
        a(call("L_wait"))
        for t in range(3):
            x = grp(False, 4 if t < 2 else 2)
            rest += [x[:4]] + [[y] for y in x[4:]]
        st(P, 10)
        for f in range(8): a(f"ds_read_b128 {ar(FR(f))}, v3 offset:{f*1024}")
    else:
        QA = opt.get('qa', 2)
        qloads(range(QA))
        a("L_odd2:")
        if opt.get('cpf', 0):
            a("s_lshl_b32 s3, s29, 2"); a("s_add_u32 s3, s3, s20"); a("s_xor_b32 s3, s3, 1")
            a(f"s_cmp_ge_u32 s3, {4*opt['cpf']}"); a("s_cbranch_scc1 L_nopf")
            a("s_and_b32 s3, s3, 3"); a("s_cmp_lg_u32 s3, 0"); a("s_cbranch_scc1 L_nopf")
            a("s_getpc_b64 s[68:69]")
            a("s_lshl_b32 s3, s29, 10"); a("s_add_u32 s68, s68, s3"); a("s_addc_u32 s69, s69, 0")
            a("v_mov_b32 v41, s69"); a("v_add_co_u32 v40, vcc, s68, v1"); a("v_addc_co_u32 v41, vcc, 0, v41, vcc")
            a("global_load_dwordx4 v[44:47], v[40:41], off")
            a("L_nopf:")
        a("s_mov_b32 s35, 0"); a(f"s_mov_b32 s25, {opt.get('slowpolls', 2048)}")
        a("s_lshl_b32 s100, s28, 10")
        a("s_lshl_b32 s101, s29, 2"); a("s_add_u32 s101, s101, s20"); a("s_lshl_b32 s101, s101, 3"); a("s_add_u32 s101, s101, s100")
        a("s_add_u32 s21, s21, 1"); a("s_lshl_b32 s21, s21, 28"); a("s_and_b32 s63, s63, 0x0fffffff"); a("s_or_b32 s63, s63, s21")
        a("s_sub_u32 s60, s62, 2000"); a("s_subb_u32 s61, s63, 0")
        a(f"s_waitcnt vmcnt({4*QA})")
        st(P, 9)
        a(call("L_flag"))
        a("buffer_load_dwordx4 v[56:59], v1, s[4:7], s100 offen sc1")
        qloads(range(QA, 4))
        srd(P, 16, 94, 95, 16 << 20)
        a("v_lshlrev_b32 v6, 2, v0"); a("v_add_u32 v6, 0x20100, v6")
        a("v_and_b32 v8, 3, v0"); a("v_lshl_add_u32 v8, v8, 8, v6")
        a("s_lshl_b32 s3, s20, 8"); a("v_add_u32 v6, s3, v6")
        a("v_mov_b32 v7, 0")
        a("ds_write_b32 v6, v7")
        a("v_mov_b32 v3, v1")
        for i in range(128, 256): a(f"v_mov_b32 v{i}, 0")
        sum_init(P, msum)
        a("v_mov_b32 v7, 1")
        a(f"s_waitcnt vmcnt({16-4*QA})")
        probe_check(P)
        a("s_cbranch_scc0 L_go")
        a(call("L_poll"))
        a("s_cbranch_scc1 L_redo")
        a("L_go:")
        st(P, 1)
        a("s_mov_b32 s25, 0x100000")
        a("s_lshl_b32 s22, s20, 12")
        if opt.get('rot', 0):
            a("s_and_b32 s99, s29, 15"); a("s_lshl_b32 s99, s99, 14")
        def dma_hdr(first=False):
            r = [] if first else ["s_add_u32 s22, s22, 0x4000"]
            if opt.get('rot', 0): return r + ["s_add_u32 s23, s22, s99", "s_and_b32 s23, s23, 0x3ffff", "s_and_b32 m0, s22, 0x1ffff", "s_nop 0"]
            return r + ["s_and_b32 s23, s22, 0xfffff", "s_and_b32 m0, s22, 0x1ffff", "s_nop 0"]
        dma = lambda k: f"buffer_load_dwordx4 v1, s[12:15], s23 offen offset:{k*1024} sc1 lds"
        NE = opt.get('ne', 4)
        if opt.get('oddfirst', 0):
            a("s_bitcmp0_b32 s20, 0")
            a("s_cbranch_scc1 L_go_e")
            a("s_sub_u32 s22, s22, 0x1000")
            for stp in range(2):
                P += dma_hdr(True) + [dma(k) for k in range(4)]
                a("s_add_u32 s22, s22, 0x1000")
                P += dma_hdr(True) + [dma(k) for k in range(4)]
                if stp == 0: a("s_add_u32 s22, s22, 0x3000")
            for stp in range(2): P += dma_hdr() + [dma(k) for k in range(4)]
            a("s_waitcnt vmcnt(16) lgkmcnt(0)")
            a("s_branch L_go_j")
            a("L_go_e:")
            a("s_add_u32 s22, s22, 0x4000")
            for stp in range(2): P += dma_hdr() + [dma(k) for k in range(4)]
            a("s_waitcnt vmcnt(8) lgkmcnt(0)")
            a("L_go_j:")
        else:
            for stp in range(NE): P += dma_hdr(stp == 0) + [dma(k) for k in range(4)]
            if sched: a(call("L_uload"))
            a(f"s_waitcnt vmcnt({4*NE-4+6*sched}) lgkmcnt(0)")
        a("s_barrier")
        st(P, 10)
        for f in range(8): a(f"ds_read_b128 {ar(FR(f))}, v3 offset:{f*1024}")
        for stp in range(NE, 6): rest += [dma_hdr() + [dma(0)]] + [[dma(k)] for k in range(1, 4 if stp < 5 else 2)]
    g = step_gaps(1, 'first', opt)
    for i in range(32):
        if opt.get('chain', 0):
            if i % 16 < 4: a(f"s_waitcnt lgkmcnt({7 - (i//16)*4 - i % 16})")
        elif i % 4 == 0: a(f"s_waitcnt lgkmcnt({7 - i//4})")
        a(g[i][0]); g[i][0] = None
        if i % 2 == 1 and rest and i >= 32 - 2*len(rest) - (8 if NE > 2 else 4): P += rest.pop(0)
    assert not rest
    if skew:
        a("v_add_u32 v7, s41, v7")
        a("s_waitcnt vmcnt(10)")
        a("ds_write_b32 v6, v7")
    for qt in range(4):
        s = SB(0, qt); m = 12 + qt
        a(f"v_max3_f32 v{m}, v{s}, v{s+1}, v{s+2}")
        a(f"v_max3_f32 v{m}, v{m}, v{s+3}, v{s+4}")
        a(f"v_max3_f32 v{m}, v{m}, v{s+5}, v{s+6}")
        a(f"v_max_f32 v{m}, v{m}, v{s+7}")
    smax_reduce(P, [12, 13, 14, 15], "v_max_f32", 96)
    for qt in range(4):
        for r in range(4): a(f"v_sub_f32 v{NEGM(qt)+r}, 0, v{12+qt}")
        for r in range(8): a(f"v_sub_f32 v{S16(0,qt,r)}, v{S16(0,qt,r)}, v{12+qt}")
    assert NE == 4
    if not skew:
        a(f"s_waitcnt vmcnt({20 if sched else 14})")
        a("s_barrier")
    if not sched: a(call("L_uload"))
    P += flat(g)[:-1]
    if skew:
        a("v_add_u32 v7, 1, v7")
        a("s_waitcnt vmcnt(8)")
        a("ds_write_b32 v6, v7")
    else:
        a(f"s_waitcnt vmcnt({6 if sched else 12})")
        a("ds_write_b32 v6, v7")
    if sched:
        a(call("L_uproc"))
        a(call("L_uload"))
    a("s_waitcnt lgkmcnt(5)")
    st(P, 2)
    a(f"s_getpc_b64 {LINK}")
    P = fix_hazards(P)
    ev = flat(step_gaps(0, 'loop', opt)) + ["s_cbranch_scc1 L_tail"]
    od = flat(step_gaps(1, 'loop', opt)) + ["s_cbranch_scc0 L_loop"]
    fix_hazards(ev + od, insert=False, ctx=P, name='loop-entry')
    fix_hazards(ev + od, insert=False, ctx=ev + od, name='loop-back')
    B = [".p2align 6", "L_loop:"] + ev + od
    H = []; a = H.append
    a(f"s_cmp_gt_u32 s24, {2 if sched else 3}")
    lay = opt.get('asym', 0) and opt.get('lay', 1)
    if lay: a("s_cbranch_scc0 L_uproc")
    else:
        a("s_cbranch_scc1 L_hook_b")
        unit_proc(H, exact); unit_load(H, LD); flag_code(H)
    a("L_hook_b:")
    if opt.get('wb', 1) > 5:
        a(f"s_cmp_lg_u32 s24, {opt['wb']}")
        a("s_cbranch_scc1 L_hook_nb")
        a("s_or_b32 s3, s20, s29"); a("s_cmp_lg_u32 s3, 0")
        a("s_cbranch_scc1 L_loop")
        a("buffer_wbl2 sc1")
        a("s_branch L_loop")
        a("L_hook_nb:")
    if sched:
        a("s_cmp_eq_u32 s24, 3")
        a("s_cbranch_scc1 L_flag_n")
    a("s_bitcmp1_b32 s24, 0")
    a("s_cbranch_scc1 L_hook_c")
    a("s_add_u32 s100, s100, 0x4000")
    a("buffer_load_dwordx4 v[56:59], v1, s[4:7], s100 offen sc1")
    if not sched:
        a("s_cmp_eq_u32 s24, 4")
        a("s_cbranch_scc1 L_flag_n")
    a("s_branch L_loop")
    a("L_hook_c:")
    if opt.get('wb', 1) == 5:
        a("s_or_b32 s3, s20, s29"); a("s_cmp_lg_u32 s3, 0")
        a("s_cbranch_scc1 L_hook_nw")
        a("buffer_wbl2 sc1")
        a("L_hook_nw:")
    probe_check(H)
    a("s_cbranch_scc0 L_loop")
    a("s_cmp_lg_u32 s43, 0")
    a("s_cbranch_scc1 L_loop")
    a("s_branch L_poll")
    H = fix_hazards(H, ctx=od)
    T = ["L_tail:"]
    if opt.get('wb', 1) == 1: T += ["s_or_b32 s3, s20, s29", "s_cmp_lg_u32 s3, 0", "s_cbranch_scc1 L_nowb", "buffer_wbl2 sc1", "L_nowb:"]
    def epi_q(L, qt):
        for s in range(4):
            o = OT(qt, 2*s)
            for r in range(0, 8, 2): L.append(pk("v_pk_mul_f32", o+r, o+r, 20+qt, bsel=1))
            for r in range(0, 8, 2): L.append(f"v_cvt_pk_bf16_f32 v{o+r//2}, v{o+r}, v{o+r+1}")
            L.append(f"buffer_store_dwordx4 {vr(o)}, v4, s[16:19], s{31+qt} offen offset:{s*64} sc0 sc1")
    E = []
    if opt.get('tail2', 1):
        a = T.append
        lastg = flat(step_gaps(1, 'last', opt))
        valu = [x for x in lastg if x.startswith('v_exp') or x.startswith('v_cvt_pk')]
        reads = [x for x in lastg if x.startswith('ds_read')]
        p1 = PR(1, 1) + 3
        k = max(i for i, x in enumerate(valu) if x.startswith(f"v_cvt_pk_bf16_f32 v{p1},")) + 1
        sm = sum_mfmas(1, msum)
        pv = lambda qt: [m16(OT(qt, dt), ar(FR(8+dt)), vr(PR(1, qt)), vr(OT(qt, dt))) for dt in range(8)]
        T += reads + valu[:k] + [sm[0]]
        rest2 = valu[k:]
        for dt, m in enumerate(pv(0)):
            a(f"s_waitcnt lgkmcnt({7-dt})"); a(m)
            T += rest2[:2]; rest2 = rest2[2:]
        T += rest2
        x = pv(1)
        T += x[:4]
        a("v_add_f32 v12, v48, v49"); a("v_add_f32 v13, v50, v51")
        a("v_rcp_f32 v20, v12"); a("v_rcp_f32 v21, v13")
        T += x[4:] + [sm[1]]
        st(T, 3)
        epi_q(T, 0)
        T += pv(2)
        a("v_add_f32 v14, v52, v53"); a("v_add_f32 v15, v54, v55")
        a("v_rcp_f32 v22, v14"); a("v_rcp_f32 v23, v15")
        a(f"s_mov_b32 s30, {f2u(2.0**40):#x}")
        a("v_add_f32 v17, v12, v13"); a("v_add_f32 v18, v14, v15"); a("v_add_f32 v17, v17, v18")
        a("v_cmp_nlt_f32 vcc, v17, s30")
        epi_q(T, 1)
        a("s_cbranch_vccnz L_slow")
        T += pv(3)
        epi_q(T, 2); epi_q(T, 3)
        a = E.append
        a("L_epi:")
        lr = sum_final(E, msum)
        for qt in range(4): a(f"v_rcp_f32 v{20+qt}, v{lr[qt]}")
        for qt in range(4): epi_q(E, qt)
        a("s_endpgm")
        a = T.append
    else:
        T += flat(step_gaps(1, 'last', opt))
        a = T.append
        st(T, 3)
        a("L_epi:")
        lr = sum_final(T, msum)
        a(f"s_mov_b32 s30, {f2u(2.0**40):#x}")
        a(f"v_add_f32 v17, v{lr[0]}, v{lr[1]}")
        a(f"v_add_f32 v18, v{lr[2]}, v{lr[3]}")
        for qt in range(4): a(f"v_rcp_f32 v{20+qt}, v{lr[qt]}")
        a("v_add_f32 v17, v17, v18")
        a("v_cmp_nlt_f32 vcc, v17, s30")
        a("s_cmp_lg_u32 s35, 0")
        a("s_cbranch_scc1 L_fin")
        a("s_cbranch_vccnz L_slow")
        a("L_fin:")
        for qt in range(4):
            for s in range(4):
                o = OT(qt, 2*s)
                for r in range(0, 8, 2): a(pk("v_pk_mul_f32", o+r, o+r, 20+qt, bsel=1))
                for r in range(0, 8, 2): a(f"v_cvt_pk_bf16_f32 v{o+r//2}, v{o+r}, v{o+r+1}")
                a(f"buffer_store_dwordx4 {vr(o)}, v4, s[16:19], s{31+qt} offen offset:{s*64} sc0 sc1")
    if opt.get('stamp', 0):
        a("s_waitcnt vmcnt(0)")
        st(T, 5)
        st_store(T)
    a("L_end:")
    a("s_endpgm")
    T = fix_hazards(T, ctx=ev)
    X = ["L_spin:", "ds_read_b32 v9, v8", "s_waitcnt lgkmcnt(0)", "v_cmp_gt_u32 vcc, v7, v9", "s_cbranch_vccnz L_spin", "s_branch L_spin_ret"]
    X += ["L_wait:", "ds_read_b32 v9, v8", "s_waitcnt lgkmcnt(0)", "v_cmp_gt_u32 vcc, v12, v9", "s_cbranch_vccnz L_wait", f"s_setpc_b64 {LINK}"]
    if not lay:
        unit_setup(X); early_code(X, LD, opt.get('asym', 0))
    poll_code(X, opt)
    a = X.append
    a("L_redo:")
    a("s_mov_b32 s43, 1")
    a("s_mov_b32 s21, 0")
    a("L_redo_l:")
    a("s_and_b32 s23, s21, 3"); a("s_lshr_b32 s22, s21, 2"); a("s_and_b32 s22, s22, 63"); a("s_lshr_b32 s41, s21, 8")
    a(call("L_usetup")); a(call("L_uload")); a("s_waitcnt vmcnt(0)"); a(call("L_uproc"))
    a("s_add_u32 s21, s21, 1")
    a("s_cmp_lt_u32 s21, 512")
    a("s_cbranch_scc1 L_redo_l")
    a("s_lshr_b32 s41, s20, 1"); a("s_and_b32 s22, s20, 1"); a("s_lshl_b32 s22, s22, 3"); a("s_lshr_b32 s3, s29, 2"); a("s_add_u32 s22, s22, s3")
    a("s_add_u32 s22, s22, 16"); a("s_and_b32 s23, s29, 3")
    a(call("L_usetup"))
    a("s_waitcnt vmcnt(0)")
    a("s_branch L_go")
    X += slow_path(opt) + (["s_nop 7"] if E else []) + E
    X = fix_hazards(X)
    return P + B + H + T + X

def slow_path(opt):
    full = gen.main_kernel(dict(opt, stamp=0), ["s_nop 0"])
    return full[full.index("L_slow:"):]

def generate3(opt):
    full = build(opt)
    hdr = open(f"cdna_kernels/{NAME}.s.ref").read().split("; Override launch")[0]
    out = hdr
    out += "; One launch: the 32 workgroups of a KV head dequantise K/V cooperatively into d_ws (MFMA fragment order, bf16) while running flash attention.\n"
    out += f"; @launch grid=(256,1,1) block=(256,1,1) lds=132352\n"
    out += '.amdgcn_target "amdgcn-amd-amdhsa--gfx950"\n.text\n'
    out += f".globl {KMAIN}\n.p2align 8\n.type {KMAIN},@function\n{KMAIN}:\n" + fmt(full)
    out += '.section .rodata,"a"\n' + kd(KMAIN, 392, 256, 102)
    return out

if __name__ == "__main__":
    opt = {}
    path = f"cdna_kernels/{NAME}.s"
    for x in sys.argv[1:]:
        if x.startswith("-o"): path = x[2:]
        else:
            k, v = x.split("="); opt[k] = int(v)
    open(path, "w").write(generate3(opt))
    print("wrote", path)
```

```python
import sys
import gen, gen3
from gen import vr, ar, m16, srd, f2u, CSCALE, NAME, KMAIN, fmt, kd, smax_reduce, cost, flat
from gen2 import pk
from gen3 import LINK, call, mkstamp, unit_setup, unit_load, unit_proc, early_code, flag_code, probe_check, poll_code
from asmlib import fix_hazards

def SQ(qt, r=0): return 64 + qt*16 + r
def NEGM(qt): return 32 + qt*4
def OT(qt, dt): return 128 + (qt*8 + dt)*4
def QF(qt, ks): return (qt*4 + ks)*4
def KF(s, kt, ks): return 64 + (s*8 + kt*4 + ks)*4
def VF(s, dt): return 128 + (dt*2 + s)*4
ONES = 192; SIDX = 11

def smf(qt): return f"v_smfmac_f32_16x16x64_bf16 {vr(48 + 4*(qt//2))}, {ar(ONES + 4*(qt%2))}, {vr(SQ(qt), 8)}, v{SIDX}"
def qk_list(H, first=False):
    L = []
    for s in range(2):
        for kt in range(2):
            for qh in range(2):
                for ks in range(4):
                    qt = 2*H + qh; d = SQ(qt, s*8 + kt*4)
                    L.append(m16(d, ar(KF(s, kt, ks)), ar(QF(qt, ks)), vr(d) if ks else ("0" if first else vr(NEGM(qt)))))
    return L
def pv_list(H):
    return [m16(OT(2*H+qh, dt), ar(VF(s, dt)), vr(SQ(2*H+qh, 4*s)), vr(OT(2*H+qh, dt))) for dt in range(8) for qh in range(2) for s in range(2)]
def stream(H):
    out = []
    for e in range(32):
        t = e // 4; qt = 2*H + t % 2; r = (t // 2)*4 + e % 4
        out.append((f"v_exp_f32 v{SQ(qt, r)}, v{SQ(qt, r)}", f"v_cvt_pk_bf16_f32 v{SQ(qt, r//2)}, v{SQ(qt, r-1)}, v{SQ(qt, r)}" if r % 2 else None))
    return out
def kread(i): return f"ds_read_b128 {ar(64 + i*4)}, v3 offset:{(i//8)*16384 + (i%8)*1024}"
def vread(i): return f"ds_read_b128 {ar(VF(i%2, i//2))}, v2 offset:{(i%2)*16384 + 8192 + (i//2)*1024}"

def sum_init(L):
    a = L.append
    for i in range(48, 56): a(f"v_mov_b32 v{i}, 0")
    a("v_and_b32 v12, 2, v0")
    a("v_cmp_eq_u32 vcc, 0, v12")
    a("v_mov_b32 v12, 0x3f803f80")
    a("v_and_b32 v13, 1, v0")
    a("v_cndmask_b32 v14, 0, v12, vcc")
    a("v_cmp_eq_u32 vcc, 1, v13")
    a("v_sub_u32 v15, v12, v14")
    for i in range(4): a(f"v_accvgpr_write_b32 a{ONES+i}, v14")
    for i in range(4): a(f"v_accvgpr_write_b32 a{ONES+4+i}, v15")
    a(f"v_mov_b32 v{SIDX}, 0x44444444")
    a("v_mov_b32 v13, 0xeeeeeeee")
    a(f"v_cndmask_b32 v{SIDX}, v{SIDX}, v13, vcc")

def body(opt):
    D = opt.get('delta', 56)
    mf = pv_list(0) + qk_list(0) + pv_list(1) + qk_list(1)
    gaps = [[m] for m in mf]
    for H in range(2):
        for e, (x, c) in enumerate(stream(H)):
            g = D + 64*H + 2*e
            gaps[g % 128].append(x)
            if c: gaps[(g + 3) % 128].append(c)
    for i in range(16):
        gaps[2*i + 1].insert(1, kread(i))
        gaps[96 + 2*i + 1].insert(1, vread(i))
    own = {}
    if opt.get('smadj', 1):
        own[9] = [smf(0)]; own[69] = [smf(2)]
        gaps[9].append(smf(1)); gaps[69].append(smf(3))
    else:
        for p, qt in zip(opt.get('smpos', [9, 21, 69, 85]), range(4)): own[p] = [smf(qt)]
    def room(g, extra=False):
        lst = own[g] if extra else gaps[g]
        return 8 - sum(cost(x) for x in lst[1:])
    def place(lo, hi, ins):
        for g in range(lo, hi + 1):
            if room(g) >= cost(ins):
                k = 2 if len(gaps[g]) > 1 and gaps[g][1].startswith('ds_read') else 1
                gaps[g].insert(k, ins); return g
            if g in own and room(g, True) >= cost(ins):
                own[g].append(ins); return g
        raise Exception(f"no room for {ins} in {lo}..{hi}")
    W = lambda n: f"s_waitcnt lgkmcnt({n})"
    def endw(g, n):
        gaps[g].append(W(n))
    endw(15, 8); endw(31, 8); endw(47, 0); endw(127, 8)
    dma = lambda k: f"buffer_load_dwordx4 v1, s[12:15], s22 offen offset:{k*1024} sc1 lds"
    place(33, 40, "v_mov_b32 v2, v3")
    g = place(41, 44, "v_add_u32 v3, 0x8000, v3")
    place(g+1, 50, "v_and_b32 v3, 0x1ffff, v3")
    place(33, 46, "v_add_u32 v7, 1, v7")
    g = place(33, 40, "s_add_u32 s22, s22, 0x4000")
    place(g+1, 46, "s_and_b32 m0, s22, 0x1ffff")
    g = place(48, 49, "s_waitcnt vmcnt(0)")
    g = place(g+1, 51, "ds_write_b32 v6, v7")
    HP = 51
    bc = "s_bitcmp1_b32 s35, s24" if opt.get('wmask', 1) else f"s_bitcmp1_b32 {opt['hmask']:#x}, s24"
    g = place(36, 46, bc)
    for x in range(g, HP + 1):
        assert not any(y.startswith('s_add') or y.startswith('s_and') for y in gaps[x][ (gaps[x].index(bc) + 1) if x == g else 0:]), "scc clobber"
    dp = opt.get('dmapos', [55, 59, 65, 69, 75, 81, 85, 91])
    place(52, 53, "s_add_u32 s24, s24, 1")
    gd = []
    for k in range(4): gd.append(place(dp[k], dp[k] + 3, dma(k)))
    g = place(gd[3] + 1, gd[3] + 4, "s_add_u32 s22, s22, 0x4000")
    g = place(g + 1, g + 3, "s_and_b32 m0, s22, 0x1ffff")
    assert g < dp[4]
    for k in range(4): gd.append(place(dp[4+k], dp[4+k] + 3, dma(k)))
    g = place(76, 82, "ds_read_b32 v9, v8")
    g = place(86, 90, W(0))
    g = place(g+1, 93, "v_cmp_gt_u32 vcc, v7, v9")
    g = place(g+1, 95, "s_cbranch_vccnz L_spin")
    lst = gaps[g] if "s_cbranch_vccnz L_spin" in gaps[g] else own[g]
    lst.insert(lst.index("s_cbranch_vccnz L_spin") + 1, "L_spin_ret:")
    if opt.get('tail3', 0):
        g = place(gd[0] + 1, 62, "s_cmp_eq_u32 s24, 31")
        gaps[63].append("s_cbranch_scc1 L_tail")
    else: place(98, 126, "s_cmp_eq_u32 s24, 31")
    out = []
    drop = []
    if opt.get('nodma', 0): drop.append('buffer_load')
    if opt.get('novm', 0): drop.append('s_waitcnt vmcnt')
    if opt.get('nolgkm', 0): drop.append('s_waitcnt lgkm')
    if opt.get('nods', 0): drop.append('ds_read_b128')
    if opt.get('nofs', 0): drop += ['ds_read_b32', 'ds_write_b32', 's_cbranch_vccnz', 'v_cmp']
    if opt.get('nohook', 0): opt['_'] = 1
    for g in range(128):
        out.append([x for x in gaps[g] + own.get(g, []) if not any(x.startswith(d) for d in drop)])
    return out, HP, D

def units(L, exact):
    pr = []; unit_proc(pr, exact)
    ld = []; unit_load(ld, "")
    cv = pr[1:17]
    kb = pr[pr.index("s_cbranch_scc1 L_uproc_v") + 1:pr.index("s_cmp_lg_u32 s42, 0")]
    i0 = pr.index("L_uproc_v:")
    vb = pr[i0 + 1:pr.index("s_cbranch_scc1 L_uproc_vm")]
    kl = ld[ld.index("s_cbranch_scc1 L_uload_v") + 1:ld.index("s_branch L_uload_e")]
    vl = ld[ld.index("L_uload_v:") + 1:ld.index("L_uload_e:")]
    a = L.append
    def tail(tag, loads):
        a(f"L_ust_{tag}:")
        a("s_add_u32 s39, s39, 0x40000"); a("s_add_u32 s40, s40, 0x40000")
        a("s_bitcmp1_b32 6, s24")
        a(f"s_cbranch_scc0 L_uret_{tag}")
        a(f"L_uload_{tag}:")
        L.extend(loads)
        a("s_add_u32 s36, s36, 0x40000"); a("s_add_u32 s37, s37, 0x40000"); a("s_add_u32 s38, s38, 1024")
        a("s_cmp_eq_u32 s24, 2")
        a("s_cbranch_scc1 L_flag_n")
        a(f"L_uret_{tag}:")
        a(f"s_setpc_b64 {LINK}")
    a("L_uload:")
    a("s_cmp_lg_u32 s41, 0")
    a("s_cbranch_scc1 L_uload_v")
    a("s_branch L_uload_k")
    a("L_uproc:")
    a("s_cmp_lg_u32 s41, 0")
    a("s_cbranch_scc1 L_uproc_v")
    a("L_uproc_k:")
    L += cv + kb
    a("s_cmp_lg_u32 s42, 0")
    a("s_cbranch_scc1 L_uproc_km")
    a("buffer_store_dwordx4 v[16:19], v5, s[12:15], s39 offen")
    a("buffer_store_dwordx4 v[24:27], v5, s[12:15], s40 offen")
    tail("k", kl)
    a("L_uproc_v:")
    L += cv + vb
    a("s_cbranch_scc1 L_uproc_vm")
    a("buffer_store_dwordx4 v[56:59], v5, s[12:15], s39 offen")
    a("buffer_store_dwordx4 v[60:63], v5, s[12:15], s39 offen offset:16")
    tail("v", vl)

def units_mixed(L):
    L += ["L_uproc_km:", "buffer_store_dwordx4 v[16:19], v5, s[12:15], s39 offen sc1", "buffer_store_dwordx4 v[24:27], v5, s[12:15], s40 offen sc1", "s_branch L_ust_k",
          "L_uproc_vm:", "buffer_store_dwordx4 v[56:59], v5, s[12:15], s39 offen sc1", "buffer_store_dwordx4 v[60:63], v5, s[12:15], s39 offen offset:16 sc1", "s_branch L_ust_v"]

def build(opt):
    pre1 = opt.get('pre1', 0)
    gen3.SCHED[0] = pre1
    wb = opt.get('wb', 27)
    opt['hmask'] = 0 if opt.get('nohook', 0) else (0xc3f | (1 << wb))
    exact = opt.get('exact', 0); LD = ""
    st, st_store = mkstamp(opt)
    P = []; a = P.append
    a("s_cmp_ge_u32 s2, 256")
    a("s_cbranch_scc1 L_end")
    st(P, 0)
    a("s_load_dwordx16 s[80:95], s[0:1], 0")
    a("s_load_dwordx4 s[96:99], s[0:1], 64")
    if not opt.get('rtlate', 0): a("s_memrealtime s[62:63]")
    a("v_lshrrev_b32 v5, 6, v0")
    a("v_and_b32 v0, 63, v0")
    a("v_readfirstlane_b32 s20, v5")
    a("v_lshlrev_b32 v1, 4, v0")
    a("s_and_b32 s28, s2, 7")
    a("s_lshr_b32 s29, s2, 3")
    a("s_lshl_b32 s30, s28, 20")
    a("s_lshr_b32 s41, s20, 1")
    a(f"s_mov_b32 s70, {f2u(CSCALE):#x}"); a("s_mov_b32 s71, s70")
    a("s_getreg_b32 s21, hwreg(HW_REG_XCC_ID, 0, 4)")
    a("s_mov_b32 s43, 0"); a("s_mov_b32 s24, 0"); a("s_mov_b32 s42, 0")
    a("s_lshl_b32 s31, s28, 5"); a("s_add_u32 s31, s31, s29"); a("s_lshl_b32 s31, s31, 16")
    a("s_lshl_b32 s3, s20, 14"); a("s_add_u32 s31, s31, s3")
    a("s_add_u32 s32, s31, 4096"); a("s_add_u32 s33, s31, 8192"); a("s_add_u32 s34, s31, 12288")
    a("v_and_b32 v6, 15, v0"); a("v_lshrrev_b32 v7, 4, v0")
    a("v_lshlrev_b32 v4, 8, v6"); a("v_lshl_add_u32 v4, v7, 4, v4")
    a("s_waitcnt lgkmcnt(0)")
    st(P, 6)
    if opt.get('rtlate', 0): a("s_memrealtime s[62:63]")
    def qloads(qts):
        for qt in qts:
            for ks in range(4): a(f"buffer_load_dwordx4 {ar(QF(qt,ks))}, v4, s[16:19], s{31+qt} offen offset:{ks*64}")
    a("s_add_u32 s12, s98, s30"); a("s_addc_u32 s13, s99, 0"); a("s_mov_b32 s14, 0x100000"); a("s_mov_b32 s15, 0x20000")
    srd(P, 16, 80, 81, 16 << 20)
    a("s_mov_b32 s26, s98"); a("s_mov_b32 s27, s99")
    a("s_add_u32 s4, s98, 0x800000"); a("s_addc_u32 s5, s99, 0"); a("s_mov_b32 s6, 0xc000"); a("s_mov_b32 s7, 0x20000")
    a("s_bitcmp1_b32 s20, 0")
    a("s_cbranch_scc1 L_oddw")
    a("s_call_b64 s[66:67], L_early")
    a("s_barrier")
    a("s_branch L_odd")
    U2 = opt.get('u2', 0)
    if U2: early_code(P, LD, 1, part=0); unit_setup(P); early_code(P, LD, 1, part=1); units(P, exact); flag_code(P)
    else: early_code(P, LD, 1, part=0); unit_setup(P); unit_load(P, LD); early_code(P, LD, 1, part=1); unit_proc(P, exact); flag_code(P)
    a("L_oddw:")
    a("s_lshr_b32 s22, s29, 2"); a("s_add_u32 s22, s22, 24"); a("s_and_b32 s23, s29, 3")
    a(call("L_usetup"))
    a("s_barrier")
    qloads((0, 1))
    a("s_barrier")
    a("s_branch L_odd2")
    a("L_odd:")
    qloads((0, 1))
    a("L_odd2:")
    a("s_lshl_b32 s3, s29, 2"); a("s_add_u32 s3, s3, s20"); a("s_xor_b32 s3, s3, 1")
    a(f"s_cmp_ge_u32 s3, {4*opt.get('cpf', 8)}"); a("s_cbranch_scc1 L_nopf")
    a("s_and_b32 s3, s3, 3"); a("s_cmp_lg_u32 s3, 0"); a("s_cbranch_scc1 L_nopf")
    a("s_getpc_b64 s[68:69]")
    a("s_lshl_b32 s3, s29, 10"); a("s_add_u32 s68, s68, s3"); a("s_addc_u32 s69, s69, 0")
    a("v_mov_b32 v41, s69"); a("v_add_co_u32 v40, vcc, s68, v1"); a("v_addc_co_u32 v41, vcc, 0, v41, vcc")
    a("global_load_dwordx4 v[44:47], v[40:41], off")
    a("L_nopf:")
    a(f"s_mov_b32 s25, {opt.get('slowpolls', 2048)}")
    if opt.get('wmask', 1):
        a("s_cmp_eq_u32 s20, 3"); a(f"s_cselect_b32 s35, {0x3f if pre1 else 0xc3f:#x}, 0x3f")
        a("s_xor_b32 s3, s20, 2"); a("s_or_b32 s3, s3, s29"); a("s_cmp_eq_u32 s3, 0"); a(f"s_cselect_b32 s35, {0x3f | (1 << wb):#x}, s35")
    a("s_lshl_b32 s100, s28, 10")
    a("s_lshl_b32 s101, s29, 2"); a("s_add_u32 s101, s101, s20"); a("s_lshl_b32 s101, s101, 3"); a("s_add_u32 s101, s101, s100")
    if opt.get('rtlate', 0): a("s_waitcnt lgkmcnt(0)")
    a("s_add_u32 s21, s21, 1"); a("s_lshl_b32 s21, s21, 28"); a("s_and_b32 s63, s63, 0x0fffffff"); a("s_or_b32 s63, s63, s21")
    a("s_sub_u32 s60, s62, 2000"); a("s_subb_u32 s61, s63, 0")
    a("s_waitcnt vmcnt(8)")
    st(P, 9)
    def grp(first):
        r = [] if first else ["s_add_u32 s22, s22, 0x4000"]
        return r + ["s_and_b32 m0, s22, 0x1ffff", "s_nop 0"] + [f"buffer_load_dwordx4 v1, s[12:15], s22 offen offset:{k*1024} sc1 lds" for k in range(4)]
    if opt.get('split', 0):
        a(call("L_flag"))
        a("s_bitcmp0_b32 s20, 0")
        a("s_cbranch_scc1 L_noqb")
        qloads((2, 3))
        a("L_noqb:")
        a("v_lshlrev_b32 v6, 2, v0"); a("v_add_u32 v6, 0x20100, v6")
        a("v_and_b32 v8, 3, v0"); a("v_lshl_add_u32 v8, v8, 8, v6")
        a("s_lshl_b32 s3, s20, 8"); a("v_add_u32 v6, s3, v6")
        a("v_mov_b32 v7, 0")
        a("ds_write_b32 v6, v7")
        a("v_mov_b32 v3, v1"); a("v_mov_b32 v2, v1")
        for i in range(128, 256): a(f"v_mov_b32 v{i}, 0")
        sum_init(P)
        a("buffer_load_dwordx4 v[56:59], v1, s[4:7], s100 offen sc1")
        a("s_waitcnt vmcnt(0)")
        probe_check(P)
        a("s_cbranch_scc0 L_go")
        a(call("L_poll"))
        a("s_cbranch_scc1 L_redo")
        a("L_go:")
        st(P, 1)
        a("s_mov_b32 s25, 0x100000")
        a("s_lshl_b32 s22, s20, 12")
        a("s_bitcmp1_b32 s20, 0")
        a("s_cbranch_scc1 L_go_o")
        for t in range(2):
            P += grp(True); a("s_add_u32 s22, s22, 0x1000"); P += grp(True); a(f"s_add_u32 s22, s22, {0x3000 if t == 0 else -0x1000 & 0xffffffff:#x}")
        qloads((2, 3))
        for t in range(2): P += grp(False)
        a("s_waitcnt vmcnt(16) lgkmcnt(0)")
        a("s_branch L_go_j")
        a("L_go_o:")
        a("s_add_u32 s22, s22, 0x4000")
        for t in range(2): P += grp(False)
        a("s_waitcnt lgkmcnt(0)")
        a("L_go_j:")
        srd(P, 16, 94, 95, 16 << 20)
        a("s_barrier")
        st(P, 10)
        B, HP, D = body(opt)
        for i in range(15): a(kread(i))
        nread = 15
        rest = []
        for t in range(2):
            x = grp(False); rest += [x[:4]] + [[y] for y in x[4:]]
        for H in range(2):
            if H == 1: a("s_waitcnt vmcnt(8)")
            for i, m in enumerate(qk_list(H, True)[:8]):
                if H == 0 and i < 4: a(f"s_waitcnt lgkmcnt({nread - 1 - i})")
                a(m)
                if H == 0 and i == 0: a(kread(15)); nread += 1
                if H == 0 and i >= 4: a(vread(nread - 16)); nread += 1
                if H == 1: P += rest.pop(0)
            for qh in range(2):
                s = SQ(2*H + qh)
                a(f"v_max3_f32 v{12+qh}, v{s}, v{s+1}, v{s+2}")
                a(f"v_max_f32 v{12+qh}, v{12+qh}, v{s+3}")
            smax_reduce(P, [12, 13], "v_max_f32", 14)
            for qh in range(2):
                for r in range(4): a(f"v_sub_f32 v{NEGM(2*H+qh)+r}, 0, v{12+qh}")
            v0 = [f"v_sub_f32 v{SQ(2*H+qh, r)}, v{SQ(2*H+qh, r)}, v{12+qh}" for qh in range(2) for r in range(4)]
            if H == 0:
                pend = None
                for x, c in stream(0):
                    v0.append(x)
                    if pend: v0.append(pend)
                    pend = c
                v0.append(pend)
                a("s_waitcnt lgkmcnt(4)")
            for i, m in enumerate(qk_list(H)[8:]):
                a(m)
                if nread < 32: a(vread(nread - 16)); nread += 1
                budget = 8
                while v0 and budget >= cost(v0[0]) and (H == 1 or len(v0) > 56 - 2*i - 4): budget -= cost(v0[0]); a(v0.pop(0))
            P += v0
        assert not rest
    else:
        a(call("L_flag"))
        a("buffer_load_dwordx4 v[56:59], v1, s[4:7], s100 offen sc1")
        qloads((2, 3))
        srd(P, 16, 94, 95, 16 << 20)
        a("v_lshlrev_b32 v6, 2, v0"); a("v_add_u32 v6, 0x20100, v6")
        a("v_and_b32 v8, 3, v0"); a("v_lshl_add_u32 v8, v8, 8, v6")
        a("s_lshl_b32 s3, s20, 8"); a("v_add_u32 v6, s3, v6")
        a("v_mov_b32 v7, 0")
        a("ds_write_b32 v6, v7")
        a("v_mov_b32 v3, v1"); a("v_mov_b32 v2, v1")
        for i in range(128, 256): a(f"v_mov_b32 v{i}, 0")
        sum_init(P)
        a("s_waitcnt vmcnt(8)")
        probe_check(P)
        a("s_cbranch_scc0 L_go")
        a(call("L_poll"))
        a("s_cbranch_scc1 L_redo")
        a("L_go:")
        st(P, 1)
        a("s_mov_b32 s25, 0x100000")
        a("s_lshl_b32 s22, s20, 12")
        def grp(first):
            r = [] if first else ["s_add_u32 s22, s22, 0x4000"]
            return r + ["s_and_b32 m0, s22, 0x1ffff", "s_nop 0"] + [f"buffer_load_dwordx4 v1, s[12:15], s22 offen offset:{k*1024} sc1 lds" for k in range(4)]
        for t in range(4): P += grp(t == 0)
        if pre1: a(call("L_uload"))
        a(f"s_waitcnt vmcnt({8 + 6*pre1}) lgkmcnt(0)")
        a("s_barrier")
        st(P, 10)
        for i in range(15): a(kread(i))
        rest = []
        for t in range(2):
            x = grp(False); rest += [x[:4]] + [[y] for y in x[4:]]
        B, HP, D = body(opt)
        f0 = qk_list(0, True)[:8] + qk_list(1, True)[:8]
        nread = 15
        for i, m in enumerate(f0):
            if i < 4: a(f"s_waitcnt lgkmcnt({nread - 1 - i})")
            a(m)
            if i == 0: a(kread(15)); nread += 1
            if i >= 4 and nread < 27: a(vread(nread - 16)); nread += 1
            if i % 2 == 1 and rest: P += rest.pop(0)
        assert not rest
        for qt in range(4):
            s = SQ(qt)
            a(f"v_max3_f32 v{12+qt}, v{s}, v{s+1}, v{s+2}")
            a(f"v_max_f32 v{12+qt}, v{12+qt}, v{s+3}")
        smax_reduce(P, [12, 13, 14, 15], "v_max_f32", 68 if pre1 else 16)
        for qt in range(2):
            for r in range(4): a(f"v_sub_f32 v{NEGM(qt)+r}, 0, v{12+qt}")
        v0 = [f"v_sub_f32 v{NEGM(qt)+r}, 0, v{12+qt}" for qt in (2, 3) for r in range(4)]
        v0 += [f"v_sub_f32 v{SQ(qt, r)}, v{SQ(qt, r)}, v{12+qt}" for qt in range(4) for r in range(4)]
        nsub = len(v0)
        pend = None
        for x, c in stream(0):
            v0.append(x)
            if pend: v0.append(pend)
            pend = c
        v0.append(pend)
        a("s_waitcnt lgkmcnt(11)")
        for i, m in enumerate(qk_list(0)[8:] + qk_list(1)[8:]):
            a(m)
            if nread < 32: a(vread(nread - 16)); nread += 1
            budget = 8
            while v0 and budget >= cost(v0[0]): budget -= cost(v0[0]); a(v0.pop(0))
        P += v0
    n1 = (128 - (D + 64)) // 2
    s1 = stream(1)
    for e in range(n1):
        a(s1[e][0])
        if e >= 1 and s1[e-1][1] and D + 64 + 2*(e-1) + 3 < 128: a(s1[e-1][1])
    if s1[n1-1][1] and D + 64 + 2*(n1-1) + 3 < 128: a(s1[n1-1][1])
    a("v_add_u32 v3, 0x8000, v3")
    a("s_waitcnt vmcnt(8) lgkmcnt(0)")
    a("s_barrier")
    if pre1: a(call("L_uproc"))
    st(P, 2)
    a(f"s_getpc_b64 {LINK}")
    a("L_pc:")
    a("s_add_u32 s64, s64, L_loop-L_pc"); a("s_addc_u32 s65, s65, 0")
    a("s_branch L_entry")
    P = fix_hazards(P)
    first = flat(B[:HP+1]); second = flat(B[HP+1:])
    fix_hazards(first + second, insert=False, ctx=P, name='loop-entry')
    fix_hazards(first + second, insert=False, ctx=first + second, name='loop-back')
    Lp = [".p2align 6", "L_loop:"] + second + ([] if opt.get('tail3', 0) else ["s_cbranch_scc1 L_tail"]) + ["L_entry:"] + first + ["s_cbranch_scc0 L_loop"]
    H = []; a = H.append
    a("s_sub_u32 s3, s24, 1")
    a(f"s_cmp_gt_u32 s3, {1 if pre1 else 2}")
    if U2:
        a("s_cbranch_scc1 L_hook_s")
        a("s_cmp_lg_u32 s41, 0")
        a("s_cbranch_scc1 L_uproc_v")
        a("s_branch L_uproc_k")
    else:
        a("s_cbranch_scc0 L_uproc")
        a("s_branch L_hook_s")
    a("L_hook_w:")
    a("s_cmp_eq_u32 s24, 0")
    a("s_cbranch_scc1 L_uload")
    if not opt.get('wmask', 1):
        a("s_or_b32 s3, s20, s29"); a("s_cmp_lg_u32 s3, 0")
        a("s_cbranch_scc1 L_loop")
    a("buffer_wbl2 sc1")
    a("s_branch L_loop")
    a("L_hook_s:")
    a("s_cmp_gt_u32 s3, 10")
    a("s_cbranch_scc1 L_hook_w")
    if pre1:
        a("s_cmp_eq_u32 s24, 3")
        a("s_cbranch_scc1 L_flag_n")
    a("s_bitcmp1_b32 s24, 0")
    a("s_cbranch_scc1 L_hook_c")
    a("s_add_u32 s100, s100, 0x4000")
    a("buffer_load_dwordx4 v[56:59], v1, s[4:7], s100 offen sc1")
    if not pre1:
        a("s_cmp_eq_u32 s24, 4")
        a("s_cbranch_scc1 L_flag_n")
    a("s_branch L_loop")
    a("L_hook_c:")
    probe_check(H)
    a("s_cbranch_scc0 L_loop")
    a("s_cmp_lg_u32 s43, 0")
    a("s_cbranch_scc1 L_loop")
    a("s_branch L_poll")
    H = fix_hazards(H, ctx=first)
    def epi_q(L, qt):
        for s in range(4):
            o = OT(qt, 2*s)
            for r in range(0, 8, 2): L.append(pk("v_pk_mul_f32", o+r, o+r, 20+qt, bsel=1))
            for r in range(0, 8, 2): L.append(f"v_cvt_pk_bf16_f32 v{o+r//2}, v{o+r}, v{o+r+1}")
            L.append(f"buffer_store_dwordx4 {vr(o)}, v4, s[16:19], s{31+qt} offen offset:{s*64} sc0 sc1")
    if opt.get('tail3', 0):
        tr = opt.get('tr', 1)
        def epi_ops(qt):
            if not tr:
                L = []; epi_q(L, qt); return [L[9*k:9*k+9] for k in range(4)]
            w = []
            for s in range(4):
                o = OT(qt, 2*s)
                for r in range(0, 8, 2): w.append(pk("v_pk_mul_f32", o+r, o+r, 20+qt, bsel=1))
                for r in range(0, 8, 2): w.append(f"v_cvt_pk_bf16_f32 v{o+r//2}, v{o+r}, v{o+r+1}")
                w.append(f"ds_write_b128 v{24+s}, {vr(o)} offset:{qt*16384}")
            w.append("s_waitcnt lgkmcnt(0)")
            for k in range(4): w.append(f"ds_read_b128 {vr(OT(qt, 2*k))}, v{28+k} offset:{qt*16384}")
            st_ = lambda k: [f"s_waitcnt lgkmcnt({3-k})", f"buffer_store_dwordx4 {vr(OT(qt, 2*k))}, v1, s[16:19], s{31+qt} offen offset:{k*1024} sc0 sc1"]
            return [w + st_(0), st_(1), st_(2), st_(3)]
        T = ["L_tail:", "ds_read_b32 v9, v8"]; a = T.append
        if tr:
            a("v_and_b32 v16, 15, v0"); a("v_lshrrev_b32 v17, 4, v0"); a("s_lshl_b32 s3, s20, 12")
            a("v_lshlrev_b32 v18, 8, v16"); a("v_add_u32 v18, s3, v18"); a("v_xor_b32 v19, v16, v17")
            for s in range(4):
                a(f"v_xor_b32 v{24+s}, {4*s}, v19"); a(f"v_lshl_add_u32 v{24+s}, v{24+s}, 4, v18")
            a("v_lshlrev_b32 v18, 8, v17"); a("v_add_u32 v18, s3, v18")
            for k in range(4):
                a(f"v_xor_b32 v{28+k}, {4*k}, v19"); a(f"v_lshl_add_u32 v{28+k}, v{28+k}, 4, v18"); a(f"v_add_u32 v{28+k}, {k*1024}, v{28+k}")
        a("L_tail_w:")
        a("s_waitcnt lgkmcnt(0)")
        a("v_cmp_gt_u32 vcc, v7, v9")
        a("s_cbranch_vccz L_tail_g")
        a("ds_read_b32 v9, v8")
        a("s_branch L_tail_w")
        a("L_tail_g:")
        rem = [x for g in B[64:] for x in g if (x.startswith('v_exp') or x.startswith('v_cvt_pk')) and int(x.split()[1][1:-1]) < SQ(2)]
        for i, m in enumerate(pv_list(1)):
            a(m)
            if i == 1: T += [smf(2), smf(3)]
            budget = 8
            if i >= 4 and i % 2 == 0: a(vread((i - 4) // 2)); budget = 4 if cost(rem[0]) == 4 else 8
            while rem and budget >= cost(rem[0]): budget -= cost(rem[0]); a(rem.pop(0))
        T += [vread(14), vread(15)] + rem + [smf(0), smf(1)]
        for i, m in enumerate(pv_list(0)):
            if i % 8 == 0: a(f"s_waitcnt lgkmcnt({12 - 4*(i//8)})")
            a(m)
            if i == 6: a("v_add_f32 v12, v48, v49"); a("v_add_f32 v13, v50, v51")
            if i == 8: a("v_rcp_f32 v20, v12")
            if i == 9: a("v_rcp_f32 v21, v13")
        if tr: a("s_waitcnt vmcnt(0)")
        q1 = qk_list(1)
        T += q1[:8]
        st(T, 3)
        ch = epi_ops(0) + epi_ops(1)
        T += ch[0] + q1[8:20] + ch[1] + q1[20:] + ch[2]
        s1 = []; pend = None
        for x, c in stream(1):
            s1.append(x)
            if pend: s1.append(pend)
            pend = c
        s1.append(pend)
        T += s1[:24] + ch[3] + s1[24:] + [smf(2), smf(3)]
        x = pv_list(1)
        T += x[:12] + ch[4] + x[12:24]
        a("v_add_f32 v14, v52, v53"); a("v_add_f32 v15, v54, v55")
        a("v_rcp_f32 v22, v14"); a("v_rcp_f32 v23, v15")
        a(f"s_mov_b32 s30, {f2u(2.0**40):#x}")
        a("v_add_f32 v17, v12, v13"); a("v_add_f32 v18, v14, v15"); a("v_add_f32 v17, v17, v18")
        a("v_cmp_nlt_f32 vcc, v17, s30")
        T += ch[5] + x[24:] + ch[6]
        a("s_cbranch_vccnz L_slow")
        c2 = epi_ops(2); c3 = epi_ops(3)
        T += c2[0][:-2] + ch[7][1:] + c2[0][-2:] + c2[1] + c3[0][:-2] + c2[2][1:] + c2[3][1:] + c3[0][-2:] + c3[1] + c3[2] + c3[3] if tr else ch[7] + sum(c2 + c3, [])
    else:
        T = ["L_tail:", smf(0), smf(1)]; a = T.append
        rem = [x for g in B[:64] for x in g if (x.startswith('v_exp') or x.startswith('v_cvt_pk')) and int(x.split()[1][1:-1]) >= SQ(2)]
        if opt.get('tr0', 0):
            a("s_lshl_b32 s3, s20, 12")
            rem += ["v_and_b32 v16, 15, v0", "v_lshrrev_b32 v17, 4, v0", "v_lshlrev_b32 v18, 8, v16", "v_add_u32 v18, s3, v18", "v_xor_b32 v19, v16, v17"]
            for s in range(4): rem += [f"v_xor_b32 v{24+s}, {4*s}, v19", f"v_lshl_add_u32 v{24+s}, v{24+s}, 4, v18"]
            rem += ["v_lshlrev_b32 v18, 8, v17", "v_add_u32 v18, s3, v18"]
            for k in range(4): rem += [f"v_xor_b32 v{28+k}, {4*k}, v19", f"v_lshl_add_u32 v{28+k}, v{28+k}, 4, v18", f"v_add_u32 v{28+k}, {k*1024}, v{28+k}"]
        for i, m in enumerate(pv_list(0)):
            if i == 16: a("s_waitcnt lgkmcnt(0)")
            a(m)
            budget = 8
            while rem and budget >= cost(rem[0]): budget -= cost(rem[0]); a(rem.pop(0))
        T += rem
        a("v_add_f32 v12, v48, v49"); a("v_add_f32 v13, v50, v51")
        a("v_rcp_f32 v20, v12"); a("v_rcp_f32 v21, v13")
        T += [smf(2), smf(3)]
        x = pv_list(1)
        if opt.get('tr0', 0):
            def prep(qt):
                w = []
                for s in range(4):
                    o = OT(qt, 2*s)
                    for r in range(0, 8, 2): w.append(pk("v_pk_mul_f32", o+r, o+r, 20+qt, bsel=1))
                    for r in range(0, 8, 2): w.append(f"v_cvt_pk_bf16_f32 v{o+r//2}, v{o+r}, v{o+r+1}")
                    w.append(f"ds_write_b128 v{24+s}, {vr(o)} offset:{qt*16384}")
                return w
            rd = lambda qt: ["s_waitcnt lgkmcnt(0)"] + [f"ds_read_b128 {vr(OT(qt, 2*k))}, v{28+k} offset:{qt*16384}" for k in range(4)]
            stq = lambda qt: [f"buffer_store_dwordx4 {vr(OT(qt, 2*k))}, v1, s[16:19], s{31+qt} offen offset:{k*1024} sc0 sc1" for k in range(4)]
            T += x[:6]
            a("s_waitcnt vmcnt(0)")
            st(T, 3)
            T += prep(0) + rd(0) + x[6:12] + ["s_waitcnt lgkmcnt(0)"] + stq(0)[:2] + prep(1) + rd(1) + stq(0)[2:] + x[12:24]
            a("v_add_f32 v14, v52, v53"); a("v_add_f32 v15, v54, v55")
            a("v_rcp_f32 v22, v14"); a("v_rcp_f32 v23, v15")
            a(f"s_mov_b32 s30, {f2u(2.0**40):#x}")
            a("v_add_f32 v17, v12, v13"); a("v_add_f32 v18, v14, v15"); a("v_add_f32 v17, v17, v18")
            a("v_cmp_nlt_f32 vcc, v17, s30")
            T += ["s_waitcnt lgkmcnt(0)"] + stq(1)[:1] + x[24:] + stq(1)[1:3]
            a("s_cbranch_vccnz L_slow")
            T += prep(2) + rd(2) + stq(1)[3:] + prep(3) + ["s_waitcnt lgkmcnt(4)"] + stq(2)[:2] + rd(3) + stq(2)[2:] + ["s_waitcnt lgkmcnt(0)"] + stq(3)
        else:
            T += x[:8]
            st(T, 3)
            epi_q(T, 0)
            T += x[8:20]
            a("v_add_f32 v14, v52, v53"); a("v_add_f32 v15, v54, v55")
            a("v_rcp_f32 v22, v14"); a("v_rcp_f32 v23, v15")
            a(f"s_mov_b32 s30, {f2u(2.0**40):#x}")
            a("v_add_f32 v17, v12, v13"); a("v_add_f32 v18, v14, v15"); a("v_add_f32 v17, v17, v18")
            a("v_cmp_nlt_f32 vcc, v17, s30")
            T += x[20:]
            epi_q(T, 1)
            a("s_cbranch_vccnz L_slow")
            epi_q(T, 2); epi_q(T, 3)
    if opt.get('stamp', 0):
        a("s_waitcnt vmcnt(0)")
        st(T, 5)
        st_store(T)
    a("L_end:")
    a("s_endpgm")
    T = fix_hazards(T, ctx=(flat(B[:64]) if opt.get('tail3', 0) else second))
    X = ["L_spin:", "ds_read_b32 v9, v8", "s_waitcnt lgkmcnt(0)", "v_cmp_gt_u32 vcc, v7, v9", "s_cbranch_vccnz L_spin", "s_branch L_spin_ret"]
    if U2: units_mixed(X)
    poll_code(X, dict(opt, asym=1))
    a = X.append
    a("L_redo:")
    a("s_mov_b32 s43, 1")
    a("s_mov_b32 s21, 0")
    a("L_redo_l:")
    a("s_and_b32 s23, s21, 3"); a("s_lshr_b32 s22, s21, 2"); a("s_and_b32 s22, s22, 63"); a("s_lshr_b32 s41, s21, 8")
    a(call("L_usetup")); a(call("L_uload")); a("s_waitcnt vmcnt(0)"); a(call("L_uproc"))
    a("s_add_u32 s21, s21, 1")
    a("s_cmp_lt_u32 s21, 512")
    a("s_cbranch_scc1 L_redo_l")
    a("s_lshr_b32 s41, s20, 1"); a("s_and_b32 s22, s20, 1"); a("s_lshl_b32 s22, s22, 3"); a("s_lshr_b32 s3, s29, 2"); a("s_add_u32 s22, s22, s3")
    a("s_add_u32 s22, s22, 16"); a("s_and_b32 s23, s29, 3")
    a(call("L_usetup"))
    a("s_waitcnt vmcnt(0)")
    a("s_branch L_go")
    a("L_slow:")
    a("s_waitcnt vmcnt(0) lgkmcnt(0)")
    for qt in range(4): a(f"v_mov_b32 v{16+qt}, 0xff800000")
    def loads(kinds):
        for s in range(2):
            a(f"s_add_u32 s37, s36, {s*16384}"); a("s_add_u32 s38, s37, 4096"); a("s_add_u32 s39, s37, 8192"); a("s_add_u32 s40, s37, 12288")
            for f in range(8): a(f"buffer_load_dwordx4 {ar(64 + (s*8+f)*4)}, v1, s[12:15], s{37+f//4} offen offset:{(f%4)*1024} sc1")
            if kinds == 2:
                for f in range(8): a(f"buffer_load_dwordx4 {ar(VF(s, f))}, v1, s[12:15], s{39+f//4} offen offset:{(f%4)*1024} sc1")
        a("s_waitcnt vmcnt(0)")
    a("s_mov_b32 s36, 0")
    a("L_slow1:")
    loads(1)
    X += qk_list(0, True) + qk_list(1, True)
    a("s_nop 7")
    for qt in range(4):
        for r in range(0, 16, 2): a(f"v_max3_f32 v{16+qt}, v{16+qt}, v{SQ(qt,r)}, v{SQ(qt,r+1)}")
    a("s_add_u32 s36, s36, 0x8000")
    a("s_cmp_lt_u32 s36, 0x100000")
    a("s_cbranch_scc1 L_slow1")
    smax_reduce(X, [16, 17, 18, 19], "v_max_f32")
    for qt in range(4):
        for r in range(4): a(f"v_sub_f32 v{NEGM(qt)+r}, 0, v{16+qt}")
    for i in range(128, 256): a(f"v_mov_b32 v{i}, 0")
    for i in range(48, 56): a(f"v_mov_b32 v{i}, 0")
    a("s_mov_b32 s36, 0")
    a("L_slow2:")
    loads(2)
    X += qk_list(0) + qk_list(1)
    a("s_nop 7")
    for Hh in range(2):
        for x, c in stream(Hh): a(x)
        for x, c in stream(Hh):
            if c: a(c)
    X += pv_list(0) + pv_list(1) + [smf(q) for q in range(4)]
    a("s_nop 7")
    a("s_add_u32 s36, s36, 0x8000")
    a("s_cmp_lt_u32 s36, 0x100000")
    a("s_cbranch_scc1 L_slow2")
    for qt in range(4): a(f"v_add_f32 v{12+qt}, v{48+2*qt}, v{49+2*qt}")
    for qt in range(4): a(f"v_rcp_f32 v{20+qt}, v{12+qt}")
    for qt in range(4): epi_q(X, qt)
    a("s_endpgm")
    X = fix_hazards(X)
    return P + Lp + H + T + X

DOC = """; ---------------------------------------------------------------------------------------------------------------
;   Hand-off flags at d_ws + 8 MiB carry the producer's entry clock and XCC id: a flag counts only inside this launch's time
; ---------------------------------------------------------------------------------------------------------------
"""

def generate(opt):
    full = build(opt)
    hdr = open(f"cdna_kernels/{NAME}.s.ref").read().split("; Override launch")[0]
    out = hdr
    out += DOC
    out += f"; @launch grid=(256,1,1) block=(256,1,1) lds={opt.get('lds', 163840)}\n"
    out += '.amdgcn_target "amdgcn-amd-amdhsa--gfx950"\n.text\n'
    out += f".globl {KMAIN}\n.p2align 8\n.type {KMAIN},@function\n{KMAIN}:\n" + fmt(full)
    out += '.section .rodata,"a"\n' + kd(KMAIN, 456, 256, 102)
    return out

if __name__ == "__main__":
    opt = {}
    path = f"cdna_kernels/{NAME}.s"
    for x in sys.argv[1:]:
        if x.startswith("-o"): path = x[2:]
        else:
            k, v = x.split("="); opt[k] = [int(y) for y in v.split(",")] if "," in v else int(v)
    open(path, "w").write(generate(opt))
    print("wrote", path)
```

```python
import sys
import gen
from gen import *
from gen2 import pk

LINK = "s[64:65]"
def call(lbl): return f"s_call_b64 {LINK}, {lbl}"
class Ctx: pass

def mkstamp(opt):
    mode = opt.get('stamp', 0)
    cols = {0: [], 1: [0, 6, 9, 1, 10, 2, 3, 5], 3: [0, 2, 3, 5, 11, 12], 4: [0, 7, 8, 9, 1, 10, 2, 5]}[mode]
    def st(L, k):
        if k in cols: L.append(f"s_memrealtime s[{44+2*cols.index(k)}:{45+2*cols.index(k)}]")
        if mode == 3 and k == 2: L.append(f"s_memtime s[{44+2*cols.index(11)}:{45+2*cols.index(11)}]")
        if mode == 3 and k == 3: L.append(f"s_memtime s[{44+2*cols.index(12)}:{45+2*cols.index(12)}]")
    def store(L):
        if not mode: return
        a = L.append
        a("s_waitcnt lgkmcnt(0)")
        a("s_lshl_b32 s77, s2, 2"); a("s_add_u32 s77, s77, s20"); a("s_lshl_b32 s76, s77, 7")
        a("s_add_u32 s72, s26, 0x1000000"); a("s_addc_u32 s73, s27, 0"); a("s_mov_b32 s74, 0x100000"); a("s_mov_b32 s75, 0x20000")
        a("v_mov_b32 v5, 0"); a("s_mov_b64 exec, 1")
        for c in range(13):
            n = cols.index(c) if c in cols else 0
            a(f"v_mov_b32 v6, s{44+2*n}"); a(f"v_mov_b32 v7, s{45+2*n}")
            a(f"buffer_store_dwordx2 v[6:7], v5, s[72:75], s76 offen offset:{8*c}")
            a("s_waitcnt vmcnt(0)")
    return st, store

def unit_setup(L):
    a = L.append
    a("L_usetup:")
    a("s_lshl_b32 s39, s22, 14")
    a("s_lshl_b32 s3, s23, 11")
    a("s_add_u32 s36, s39, s3")
    a("s_add_u32 s36, s36, s30")
    a("s_add_u32 s37, s36, 8192")
    a("s_lshl_b32 s38, s28, 12")
    a("s_mov_b32 s10, 0x800000"); a("s_mov_b32 s11, 0x20000")
    a("s_mov_b32 s74, 0x8000"); a("s_mov_b32 s75, 0x20000")
    a("s_mov_b32 s78, 0x8000"); a("s_mov_b32 s79, 0x20000")
    a("s_cmp_lg_u32 s41, 0")
    a("s_cbranch_scc1 L_usetup_v")
    a("s_mov_b32 s8, s82"); a("s_mov_b32 s9, s83")
    a("s_mov_b32 s72, s86"); a("s_mov_b32 s73, s87")
    a("s_mov_b32 s76, s88"); a("s_mov_b32 s77, s89")
    a("s_lshr_b32 s3, s22, 2"); a("s_lshl_b32 s3, s3, 8"); a("s_add_u32 s38, s38, s3")
    a("s_lshl_b32 s3, s23, 6"); a("s_add_u32 s39, s39, s3")
    a("s_add_u32 s40, s39, 4096")
    a("v_and_b32 v12, 3, v0"); a("v_bfe_u32 v13, v0, 2, 2"); a("v_lshrrev_b32 v14, 4, v0")
    a("v_lshlrev_b32 v10, 9, v12"); a("v_lshl_add_u32 v10, v14, 7, v10"); a("v_lshl_add_u32 v10, v13, 5, v10")
    a("v_lshlrev_b32 v5, 10, v14"); a("v_lshl_add_u32 v5, v13, 8, v5"); a("v_lshl_add_u32 v5, v12, 4, v5")
    a(f"s_setpc_b64 {LINK}")
    a("L_usetup_v:")
    a("s_mov_b32 s8, s84"); a("s_mov_b32 s9, s85")
    a("s_mov_b32 s72, s90"); a("s_mov_b32 s73, s91")
    a("s_mov_b32 s76, s92"); a("s_mov_b32 s77, s93")
    a("s_lshl_b32 s3, s22, 6"); a("s_add_u32 s38, s38, s3")
    a("s_lshl_b32 s3, s23, 3"); a("s_add_u32 s38, s38, s3")
    a("s_lshl_b32 s3, s23, 8"); a("s_add_u32 s39, s39, s3"); a("s_add_u32 s39, s39, 8192")
    a("v_and_b32 v12, 31, v0"); a("v_lshrrev_b32 v13, 5, v0")
    a("v_lshlrev_b32 v10, 13, v13"); a("v_lshl_add_u32 v10, v12, 4, v10")
    a("v_lshrrev_b32 v14, 3, v12"); a("v_lshlrev_b32 v5, 11, v14")
    a("v_and_b32 v14, 1, v12"); a("v_lshl_add_u32 v5, v14, 10, v5")
    a("v_bfe_u32 v14, v12, 1, 2"); a("v_lshl_add_u32 v5, v14, 6, v5")
    a("v_lshl_add_u32 v5, v13, 5, v5")
    a(f"s_setpc_b64 {LINK}")

SCHED = [0]
def unit_load(L, LD):
    a = L.append
    a("L_uload:")
    a("s_cmp_lg_u32 s41, 0")
    a("s_cbranch_scc1 L_uload_v")
    a("v_bfe_u32 v12, v10, 1, 8")
    a("buffer_load_dwordx4 v[56:59], v12, s[72:75], s38 offen")
    a("buffer_load_dwordx4 v[60:63], v12, s[76:79], s38 offen")
    for kt in range(2):
        for hh in range(2): a(f"buffer_load_dwordx4 {vr(16+8*kt+4*hh)}, v10, s[8:11], s{36+kt} offen offset:{hh*16}{LD}")
    a("s_branch L_uload_e")
    a("L_uload_v:")
    a("v_lshrrev_b32 v12, 8, v10")
    a("v_and_b32 v12, 32, v12")
    a("buffer_load_dwordx2 v[56:57], v12, s[72:75], s38 offen")
    a("buffer_load_dwordx2 v[58:59], v12, s[76:79], s38 offen")
    for i in range(4): a(f"buffer_load_dwordx4 {vr(16+4*i)}, v10, s[8:11], s36 offen offset:{i*512}{LD}")
    a("L_uload_e:")
    a("s_add_u32 s36, s36, 0x40000"); a("s_add_u32 s37, s37, 0x40000"); a("s_add_u32 s38, s38, 1024")
    if SCHED[0] == 0:
        a("s_cmp_eq_u32 s24, 2")
        a("s_cbranch_scc1 L_flag_n")
    a(f"s_setpc_b64 {LINK}")

def early_code(L, LD, asym, part=None):
    a = L.append
    if part is not None:
        full = []; early_code(full, LD, asym)
        k = full.index(call("L_uload")) + 1
        if part == 0: L += full[:k] + ["s_branch L_early_2"]
        else: L += ["L_early_2:"] + full[k:]
        return
    a("L_early:")
    if not asym:
        a("s_and_b32 s22, s20, 1"); a("s_lshl_b32 s22, s22, 3"); a("s_lshr_b32 s3, s29, 2"); a("s_add_u32 s22, s22, s3")
        a("s_and_b32 s23, s29, 3")
        a(call("L_usetup")); a(call("L_uload")); a("s_waitcnt vmcnt(0)"); a(call("L_uproc"))
        a("s_setpc_b64 s[66:67]")
        return
    a("s_lshr_b32 s22, s29, 2"); a("s_and_b32 s23, s29, 3")
    a(call("L_usetup"))
    a(call("L_uload"))
    a("s_sub_u32 s3, s36, 0x20000"); a("s_sub_u32 s68, s37, 0x20000"); a("s_sub_u32 s69, s38, 512")
    a("s_cmp_lg_u32 s41, 0")
    a("s_cbranch_scc1 L_early_v")
    a("buffer_load_dwordx4 v[64:67], v12, s[72:75], s69 offen")
    a("buffer_load_dwordx4 v[68:71], v12, s[76:79], s69 offen")
    for kt in range(2):
        for hh in range(2): a(f"buffer_load_dwordx4 {vr(32+8*kt+4*hh)}, v10, s[8:11], s{(3, 68)[kt]} offen offset:{hh*16}{LD}")
    a("s_branch L_early_w")
    a("L_early_v:")
    a("buffer_load_dwordx2 v[64:65], v12, s[72:75], s69 offen")
    a("buffer_load_dwordx2 v[66:67], v12, s[76:79], s69 offen")
    for i in range(4): a(f"buffer_load_dwordx4 {vr(32+4*i)}, v10, s[8:11], s3 offen offset:{i*512}{LD}")
    a("L_early_w:")
    a("s_cmp_lg_u32 s42, 0")
    a("s_cbranch_scc1 L_early_x")
    a("s_barrier")
    a("L_early_x:")
    a("s_waitcnt vmcnt(6)")
    a(call("L_uproc"))
    a("s_sub_u32 s39, s39, 0x20000"); a("s_sub_u32 s40, s40, 0x20000")
    a("s_waitcnt vmcnt(2)")
    for i in range(0, 16, 2): a(f"v_pk_mov_b32 {vr(16+i,2)}, {vr(32+i,2)}, {vr(32+i,2)} op_sel:[0,1]")
    for i in range(0, 8, 2): a(f"v_pk_mov_b32 {vr(56+i,2)}, {vr(64+i,2)}, {vr(64+i,2)} op_sel:[0,1]")
    a(call("L_uproc"))
    a("s_sub_u32 s39, s39, 0x20000"); a("s_sub_u32 s40, s40, 0x20000")
    a("s_setpc_b64 s[66:67]")

def unit_proc(L, exact):
    a = L.append; T0 = 12
    a("L_uproc:")
    for i in range(16): a(f"v_cvt_f32_i32 v{16+i}, v{16+i}")
    a("s_cmp_lg_u32 s41, 0")
    a("s_cbranch_scc1 L_uproc_v")
    for j in range(4):
        a(f"v_lshlrev_b32 v{T0}, 16, v{60+j}"); a(f"v_and_b32 v{T0+1}, 0xffff0000, v{60+j}")
        a(f"v_lshlrev_b32 v{T0+2}, 16, v{56+j}"); a(f"v_and_b32 v{T0+3}, 0xffff0000, v{56+j}")
        for c in range(2): a(pk("v_pk_add_f32", 16+8*c+2*j, 16+8*c+2*j, T0, neg_b=True))
        if not exact: a(f"v_pk_mul_f32 {vr(T0+2,2)}, {vr(T0+2,2)}, s[70:71]")
        if exact:
            for c in range(2): round_pair(L, 16+8*c+2*j, 17+8*c+2*j, 60+j)
        for c in range(2): a(pk("v_pk_mul_f32", 16+8*c+2*j, 16+8*c+2*j, T0+2))
        if exact:
            for c in range(2):
                b = 16 + 8*c + 2*j
                round_pair(L, b, b+1, 60+j)
                a(f"v_pk_mul_f32 {vr(b,2)}, {vr(b,2)}, s[70:71]")
        for c in range(2): a(f"v_cvt_pk_bf16_f32 v{16+8*c+j}, v{16+8*c+2*j}, v{17+8*c+2*j}")
    a("s_cmp_lg_u32 s42, 0")
    a("s_cbranch_scc1 L_uproc_km")
    a("buffer_store_dwordx4 v[16:19], v5, s[12:15], s39 offen")
    a("buffer_store_dwordx4 v[24:27], v5, s[12:15], s40 offen")
    a("s_branch L_uproc_e")
    a("L_uproc_km:")
    a("buffer_store_dwordx4 v[16:19], v5, s[12:15], s39 offen sc1")
    a("buffer_store_dwordx4 v[24:27], v5, s[12:15], s40 offen sc1")
    a("s_branch L_uproc_e")
    a("L_uproc_vm:")
    a("buffer_store_dwordx4 v[56:59], v5, s[12:15], s39 offen sc1")
    a("buffer_store_dwordx4 v[60:63], v5, s[12:15], s39 offen offset:16 sc1")
    a("s_branch L_uproc_e")
    a("L_uproc_v:")
    for j in range(2):
        a(f"v_lshlrev_b32 v{60+2*j}, 16, v{58+j}"); a(f"v_and_b32 v{61+2*j}, 0xffff0000, v{58+j}")
        a(f"v_lshlrev_b32 v{T0+2*j}, 16, v{56+j}"); a(f"v_and_b32 v{T0+1+2*j}, 0xffff0000, v{56+j}")
    for i in range(4):
        for rr in (0, 2): a(pk("v_pk_add_f32", 16+4*i+rr, 16+4*i+rr, 60+i, bsel=1, neg_b=True))
    if exact:
        for i in range(4):
            for rr in (0, 2): round_pair(L, 16+4*i+rr, 17+4*i+rr, 56 + rr//2)
    for i in range(4):
        for rr in (0, 2): a(pk("v_pk_mul_f32", 16+4*i+rr, 16+4*i+rr, T0+i, bsel=1))
    for rr in range(4):
        o = (56, 60, 58, 62)[rr]
        a(f"v_cvt_pk_bf16_f32 v{o}, v{16+rr}, v{20+rr}")
        a(f"v_cvt_pk_bf16_f32 v{o+1}, v{24+rr}, v{28+rr}")
    a("s_cmp_lg_u32 s42, 0")
    for x in (56, 57, 60, 61): a(f"v_permlane32_swap_b32 v{x}, v{x+2}")
    a("s_cbranch_scc1 L_uproc_vm")
    a("buffer_store_dwordx4 v[56:59], v5, s[12:15], s39 offen")
    a("buffer_store_dwordx4 v[60:63], v5, s[12:15], s39 offen offset:16")
    a("L_uproc_e:")
    a("s_add_u32 s39, s39, 0x40000"); a("s_add_u32 s40, s40, 0x40000")
    a("s_cmp_eq_u32 s24, 1" if SCHED[0] else "s_bitcmp1_b32 6, s24")
    a("s_cbranch_scc1 L_uload")
    a(f"s_setpc_b64 {LINK}")

def flag_code(L):
    a = L.append
    a("L_flag_n:")
    a("s_add_u32 s101, s101, 0x4000")
    a("L_flag:")
    a("v_mov_b32 v12, s62"); a("v_mov_b32 v13, s63"); a("v_mov_b32 v14, 0")
    a("s_mov_b64 exec, 1")
    a("buffer_store_dwordx2 v[12:13], v14, s[4:7], s101 offen")
    a("s_cmp_eq_u32 s42, 0")
    a("s_cbranch_scc1 L_flag_e")
    a("v_mov_b32 v15, 0x2000")
    a("v_or_b32 v13, 0xf0000000, v13")
    a("buffer_store_dwordx2 v[12:13], v15, s[4:7], s101 offen sc1")
    a("L_flag_e:")
    a("s_mov_b64 exec, -1")
    a(f"s_setpc_b64 {LINK}")

def window(L, r, dst, lo="s[60:61]"):
    a = L.append
    l0, l1 = lo[2:-1].split(":")
    a(f"v_subrev_co_u32 v{r}, vcc, s{l0}, v{r}")
    a(f"v_mov_b32 v15, s{l1}")
    a(f"v_subb_co_u32 v{r+1}, vcc, v{r+1}, v15, vcc")
    a(f"v_lshrrev_b32 v{r}, 24, v{r}")
    a(f"v_or_b32 v{r}, v{r}, v{r+1}")

def probe_check(L):
    window(L, 56, None); window(L, 58, None)
    L.append("v_or_b32 v56, v56, v58")
    L.append("v_cmp_ne_u32 vcc, 0, v56")
    L.append("s_cmp_lg_u64 vcc, 0")

def poll_code(L, opt):
    a = L.append
    a("L_poll:")
    a("s_mov_b32 s21, 0")
    a("s_mov_b32 s68, s60"); a("s_or_b32 s69, s61, 0xf0000000")
    a("L_poll_l:")
    a("s_add_u32 s3, s100, 0x2000")
    a("buffer_load_dwordx4 v[56:59], v1, s[4:7], s100 offen sc1")
    a("buffer_load_dwordx4 v[60:63], v1, s[4:7], s3 offen sc1")
    a("s_waitcnt vmcnt(0)")
    window(L, 56, None); window(L, 58, None); window(L, 60, None, "s[68:69]"); window(L, 62, None, "s[68:69]")
    a("v_min_u32 v56, v56, v60")
    a("v_min_u32 v58, v58, v62")
    a("v_min_u32 v60, v60, v62")
    a("v_or_b32 v56, v56, v58")
    a("v_cmp_ne_u32 vcc, 0, v56")
    a("v_cmp_eq_u32 s[96:97], 0, v60")
    a("s_or_b32 s3, s42, s24")
    a("s_cselect_b64 s[96:97], 0, s[96:97]")
    a("s_cmp_lg_u64 s[96:97], 0")
    a("s_cbranch_scc1 L_poll_t")
    a("s_cmp_lg_u64 vcc, 0")
    a("s_cbranch_scc0 L_poll_e")
    a("s_add_u32 s21, s21, 1")
    a("s_cmp_lg_u32 s3, 0")
    a("s_cbranch_scc1 L_poll_w")
    a(f"s_cmp_lt_u32 s21, {opt.get('fastpolls', 12)}")
    a("s_cbranch_scc1 L_poll_w")
    a("L_poll_t:")
    a("s_mov_b32 s42, 1")
    a(f"s_mov_b64 s[98:99], {LINK}")
    if opt.get('asym', 0):
        a("s_bitcmp1_b32 s20, 0")
        a("s_cbranch_scc1 L_poll_f")
    a("s_call_b64 s[66:67], L_early")
    a("s_mov_b32 s68, s60"); a("s_or_b32 s69, s61, 0xf0000000")
    a("s_waitcnt vmcnt(0)")
    a("L_poll_f:")
    a(call("L_flag"))
    a(f"s_mov_b64 {LINK}, s[98:99]")
    a("L_poll_w:")
    a("s_sleep 1")
    a("s_cmp_lt_u32 s21, s25")
    a("s_cbranch_scc1 L_poll_l")
    a("s_cmp_eq_u32 s21, s21")
    a("L_poll_e:")
    a(f"s_setpc_b64 {LINK}")


def build(opt):
    opt['msum'] = msum = 4; opt['fsync'] = 1; opt['fused'] = 1; opt['hooks'] = 1
    gen.SWAP_EVEN[0] = 1
    SCHED[0] = sched = opt.get('sched', 0)
    opt.setdefault('wb', 31)
    opt['hmask'] = (0x3e if sched else 0xc3e) | ((1 << opt['wb']) if opt['wb'] > 5 else 0)
    exact = opt.get('exact', 0)
    LD = " nt" if opt.get('ldnt', 0) else ""
    st, st_store = mkstamp(opt)
    P = []; a = P.append
    a("s_cmp_ge_u32 s2, 256")
    a("s_cbranch_scc1 L_end")
    st(P, 0)
    a("s_load_dwordx16 s[80:95], s[0:1], 0")
    a("s_load_dwordx4 s[96:99], s[0:1], 64")
    a("s_memrealtime s[62:63]")
    a("v_lshrrev_b32 v5, 6, v0")
    a("v_and_b32 v0, 63, v0")
    a("v_readfirstlane_b32 s20, v5")
    a("v_lshlrev_b32 v1, 4, v0")
    a("s_and_b32 s28, s2, 7")
    a("s_lshr_b32 s29, s2, 3")
    a("s_lshl_b32 s30, s28, 20")
    a("s_lshr_b32 s41, s20, 1")
    a(f"s_mov_b32 s70, {f2u(CSCALE):#x}"); a("s_mov_b32 s71, s70")
    a("s_getreg_b32 s21, hwreg(HW_REG_XCC_ID, 0, 4)")
    a("s_mov_b32 s43, 0"); a("s_mov_b32 s24, 0"); a("s_mov_b32 s42, 0")
    a("s_lshl_b32 s31, s28, 5"); a("s_add_u32 s31, s31, s29"); a("s_lshl_b32 s31, s31, 16")
    a("s_lshl_b32 s3, s20, 14"); a("s_add_u32 s31, s31, s3")
    a("s_add_u32 s32, s31, 4096"); a("s_add_u32 s33, s31, 8192"); a("s_add_u32 s34, s31, 12288")
    a("v_and_b32 v6, 15, v0"); a("v_lshrrev_b32 v7, 4, v0")
    a("v_lshlrev_b32 v4, 8, v6"); a("v_lshl_add_u32 v4, v7, 4, v4")
    a("s_waitcnt lgkmcnt(0)")
    st(P, 6)
    def qloads(qts):
        for qt in qts:
            for ks in range(4): a(f"buffer_load_dwordx4 {ar(QF(qt,ks))}, v4, s[16:19], s{31+qt} offen offset:{ks*64}{LD}")
    a("s_add_u32 s12, s98, s30"); a("s_addc_u32 s13, s99, 0"); a("s_mov_b32 s14, 0x100000"); a("s_mov_b32 s15, 0x20000")
    srd(P, 16, 80, 81, 16 << 20)
    a("s_mov_b32 s26, s98"); a("s_mov_b32 s27, s99")
    a("s_add_u32 s4, s98, 0x800000"); a("s_addc_u32 s5, s99, 0"); a("s_mov_b32 s6, 0xc000"); a("s_mov_b32 s7, 0x20000")
    if opt.get('tlb', 0):
        a("v_mov_b32 v40, 0")
        a("s_mov_b64 exec, 1")
        a("buffer_load_dword v41, v40, s[12:15], 0 offen")
        a("buffer_load_dword v42, v40, s[4:7], 0 offen")
        a("buffer_load_dword v43, v40, s[16:19], s31 offen")
        if opt['tlb'] > 1:
            srd(P, 8, 94, 95, 16 << 20)
            a("buffer_load_dword v44, v40, s[8:11], s31 offen")
        a("s_mov_b64 exec, -1")
    if opt.get('asym', 0):
        if opt.get('lay', 1):
            a("s_bitcmp1_b32 s20, 0")
            a("s_cbranch_scc1 L_oddw")
            a("s_call_b64 s[66:67], L_early")
            if opt.get('bar2', 0): a("s_barrier")
            a("s_branch L_odd")
            early_code(P, LD, 1, part=0); unit_setup(P); unit_load(P, LD); early_code(P, LD, 1, part=1); unit_proc(P, exact); flag_code(P)
            a("L_oddw:")
            a("s_lshr_b32 s22, s29, 2"); a("s_add_u32 s22, s22, 24"); a("s_and_b32 s23, s29, 3")
            a(call("L_usetup"))
            a("s_barrier")
            if opt.get('bar2', 0):
                qloads(range(opt['bar2']))
                a("s_barrier")
                qloads(range(opt['bar2'], opt.get('qa', 2)))
                a("s_branch L_odd2")
            a("L_odd:")
        else:
            a("s_bitcmp1_b32 s20, 0")
            a("s_cbranch_scc0 L_even")
            a("s_lshr_b32 s22, s29, 2"); a("s_add_u32 s22, s22, 24"); a("s_and_b32 s23, s29, 3")
            a(call("L_usetup"))
            a("s_barrier")
            a("s_branch L_odd")
            a("L_even:")
            a("s_call_b64 s[66:67], L_early")
            st(P, 8)
            a("L_odd:")
    else:
        a("s_call_b64 s[66:67], L_early")
        st(P, 8)
    skew = opt.get('skew', 0)
    rest = []
    NE = 4
    if skew:
        a("v_lshlrev_b32 v6, 2, v0"); a("v_add_u32 v6, 0x20100, v6")
        a("v_and_b32 v8, 3, v0"); a("v_lshl_add_u32 v8, v8, 8, v6")
        a("s_lshl_b32 s3, s20, 8"); a("v_add_u32 v6, s3, v6")
        a("v_mov_b32 v7, 0")
        a("ds_write_b32 v6, v7")
        a("s_waitcnt lgkmcnt(0)")
        a("s_barrier")
        a("s_cmp_lg_u32 s41, 0")
        a("s_cbranch_scc1 L_noq")
        qloads(range(4))
        a("L_noq:")
        a("s_mov_b32 s35, 0"); a(f"s_mov_b32 s25, {opt.get('slowpolls', 2048)}")
        a("s_lshl_b32 s100, s28, 10")
        a("s_lshl_b32 s101, s29, 2"); a("s_add_u32 s101, s101, s20"); a("s_lshl_b32 s101, s101, 3"); a("s_add_u32 s101, s101, s100")
        a("s_add_u32 s21, s21, 1"); a("s_lshl_b32 s21, s21, 28"); a("s_and_b32 s63, s63, 0x0fffffff"); a("s_or_b32 s63, s63, s21")
        a("s_sub_u32 s60, s62, 2000"); a("s_subb_u32 s61, s63, 0")
        a("s_cmp_lg_u32 s41, 0")
        a("s_cbranch_scc1 L_w0")
        a("s_waitcnt vmcnt(16)")
        a("s_branch L_w1")
        a("L_w0:")
        a("s_waitcnt vmcnt(0)")
        a("L_w1:")
        st(P, 9)
        a(call("L_flag"))
        a("s_cmp_eq_u32 s41, 0")
        a("s_cbranch_scc1 L_noq2")
        qloads(range(opt.get('ql1', 2)))
        a("L_noq2:")
        a("v_mov_b32 v3, v1")
        for i in range(128, 256): a(f"v_mov_b32 v{i}, 0")
        sum_init(P, msum)
        a("v_lshrrev_b32 v7, 1, v0"); a("v_and_b32 v7, 1, v7"); a("v_sub_u32 v15, 2, v7")
        a("v_mov_b32 v7, 1"); a("s_cmp_eq_u32 s41, 0"); a("s_cselect_b64 vcc, -1, 0"); a("v_cndmask_b32 v7, v7, v15, vcc")
        a("v_mov_b32 v2, v15")
        a("buffer_load_dwordx4 v[56:59], v1, s[4:7], s100 offen sc1")
        a("s_waitcnt vmcnt(0)")
        probe_check(P)
        a("s_cbranch_scc0 L_go")
        a(call("L_poll"))
        a("s_cbranch_scc1 L_redo")
        a("L_go:")
        st(P, 1)
        a("s_mov_b32 s25, 0x100000")
        a("s_lshl_b32 s22, s20, 12")
        def grp(first, n):
            r = [] if first else ["s_add_u32 s22, s22, 0x4000"]
            return r + ["s_and_b32 m0, s22, 0x1ffff", "s_nop 0"] + [f"buffer_load_dwordx4 v1, s[12:15], s22 offen offset:{k*1024} sc1 lds" for k in range(n)]
        a("s_cmp_lg_u32 s41, 0")
        a("s_cbranch_scc1 L_go_v")
        for t in range(2): P += grp(t == 0, 4)
        a("s_waitcnt vmcnt(0)")
        a("ds_write_b32 v6, v7")
        a("s_branch L_go_j")
        a("L_go_v:")
        P += grp(True, 4)
        q1 = opt.get('ql1', 2)
        qloads(range(q1, q1 + 1))
        a("s_waitcnt vmcnt(4)")
        a("ds_write_b32 v6, v7")
        qloads(range(q1 + 1, 4))
        for t in (1, 2): P += grp(False, 4)
        a("s_waitcnt vmcnt(8)")
        a("L_go_j:")
        srd(P, 16, 94, 95, 16 << 20)
        a("v_mov_b32 v12, v2")
        a(call("L_wait"))
        for t in range(3):
            x = grp(False, 4 if t < 2 else 2)
            rest += [x[:4]] + [[y] for y in x[4:]]
        st(P, 10)
        for f in range(8): a(f"ds_read_b128 {ar(FR(f))}, v3 offset:{f*1024}")
    else:
        QA = opt.get('qa', 2)
        qloads(range(QA))
        a("L_odd2:")
        if opt.get('cpf', 0):
            a("s_lshl_b32 s3, s29, 2"); a("s_add_u32 s3, s3, s20"); a("s_xor_b32 s3, s3, 1")
            a(f"s_cmp_ge_u32 s3, {4*opt['cpf']}"); a("s_cbranch_scc1 L_nopf")
            a("s_and_b32 s3, s3, 3"); a("s_cmp_lg_u32 s3, 0"); a("s_cbranch_scc1 L_nopf")
            a("s_getpc_b64 s[68:69]")
            a("s_lshl_b32 s3, s29, 10"); a("s_add_u32 s68, s68, s3"); a("s_addc_u32 s69, s69, 0")
            a("v_mov_b32 v41, s69"); a("v_add_co_u32 v40, vcc, s68, v1"); a("v_addc_co_u32 v41, vcc, 0, v41, vcc")
            a("global_load_dwordx4 v[44:47], v[40:41], off")
            a("L_nopf:")
        a("s_mov_b32 s35, 0"); a(f"s_mov_b32 s25, {opt.get('slowpolls', 2048)}")
        a("s_lshl_b32 s100, s28, 10")
        a("s_lshl_b32 s101, s29, 2"); a("s_add_u32 s101, s101, s20"); a("s_lshl_b32 s101, s101, 3"); a("s_add_u32 s101, s101, s100")
        a("s_add_u32 s21, s21, 1"); a("s_lshl_b32 s21, s21, 28"); a("s_and_b32 s63, s63, 0x0fffffff"); a("s_or_b32 s63, s63, s21")
        a("s_sub_u32 s60, s62, 2000"); a("s_subb_u32 s61, s63, 0")
        a(f"s_waitcnt vmcnt({4*QA})")
        st(P, 9)
        a(call("L_flag"))
        a("buffer_load_dwordx4 v[56:59], v1, s[4:7], s100 offen sc1")
        qloads(range(QA, 4))
        srd(P, 16, 94, 95, 16 << 20)
        a("v_lshlrev_b32 v6, 2, v0"); a("v_add_u32 v6, 0x20100, v6")
        a("v_and_b32 v8, 3, v0"); a("v_lshl_add_u32 v8, v8, 8, v6")
        a("s_lshl_b32 s3, s20, 8"); a("v_add_u32 v6, s3, v6")
        a("v_mov_b32 v7, 0")
        a("ds_write_b32 v6, v7")
        a("v_mov_b32 v3, v1")
        for i in range(128, 256): a(f"v_mov_b32 v{i}, 0")
        sum_init(P, msum)
        a("v_mov_b32 v7, 1")
        a(f"s_waitcnt vmcnt({16-4*QA})")
        probe_check(P)
        a("s_cbranch_scc0 L_go")
        a(call("L_poll"))
        a("s_cbranch_scc1 L_redo")
        a("L_go:")
        st(P, 1)
        a("s_mov_b32 s25, 0x100000")
        a("s_lshl_b32 s22, s20, 12")
        if opt.get('rot', 0):
            a("s_and_b32 s99, s29, 15"); a("s_lshl_b32 s99, s99, 14")
        def dma_hdr(first=False):
            r = [] if first else ["s_add_u32 s22, s22, 0x4000"]
            if opt.get('rot', 0): return r + ["s_add_u32 s23, s22, s99", "s_and_b32 s23, s23, 0x3ffff", "s_and_b32 m0, s22, 0x1ffff", "s_nop 0"]
            return r + ["s_and_b32 s23, s22, 0xfffff", "s_and_b32 m0, s22, 0x1ffff", "s_nop 0"]
        dma = lambda k: f"buffer_load_dwordx4 v1, s[12:15], s23 offen offset:{k*1024} sc1 lds"
        NE = opt.get('ne', 4)
        if opt.get('oddfirst', 0):
            a("s_bitcmp0_b32 s20, 0")
            a("s_cbranch_scc1 L_go_e")
            a("s_sub_u32 s22, s22, 0x1000")
            for stp in range(2):
                P += dma_hdr(True) + [dma(k) for k in range(4)]
                a("s_add_u32 s22, s22, 0x1000")
                P += dma_hdr(True) + [dma(k) for k in range(4)]
                if stp == 0: a("s_add_u32 s22, s22, 0x3000")
            for stp in range(2): P += dma_hdr() + [dma(k) for k in range(4)]
            a("s_waitcnt vmcnt(16) lgkmcnt(0)")
            a("s_branch L_go_j")
            a("L_go_e:")
            a("s_add_u32 s22, s22, 0x4000")
            for stp in range(2): P += dma_hdr() + [dma(k) for k in range(4)]
            a("s_waitcnt vmcnt(8) lgkmcnt(0)")
            a("L_go_j:")
        else:
            for stp in range(NE): P += dma_hdr(stp == 0) + [dma(k) for k in range(4)]
            if sched: a(call("L_uload"))
            a(f"s_waitcnt vmcnt({4*NE-4+6*sched}) lgkmcnt(0)")
        a("s_barrier")
        st(P, 10)
        for f in range(8): a(f"ds_read_b128 {ar(FR(f))}, v3 offset:{f*1024}")
        for stp in range(NE, 6): rest += [dma_hdr() + [dma(0)]] + [[dma(k)] for k in range(1, 4 if stp < 5 else 2)]
    g = step_gaps(1, 'first', opt)
    for i in range(32):
        if opt.get('chain', 0):
            if i % 16 < 4: a(f"s_waitcnt lgkmcnt({7 - (i//16)*4 - i % 16})")
        elif i % 4 == 0: a(f"s_waitcnt lgkmcnt({7 - i//4})")
        a(g[i][0]); g[i][0] = None
        if i % 2 == 1 and rest and i >= 32 - 2*len(rest) - (8 if NE > 2 else 4): P += rest.pop(0)
    assert not rest
    if skew:
        a("v_add_u32 v7, s41, v7")
        a("s_waitcnt vmcnt(10)")
        a("ds_write_b32 v6, v7")
    for qt in range(4):
        s = SB(0, qt); m = 12 + qt
        a(f"v_max3_f32 v{m}, v{s}, v{s+1}, v{s+2}")
        a(f"v_max3_f32 v{m}, v{m}, v{s+3}, v{s+4}")
        a(f"v_max3_f32 v{m}, v{m}, v{s+5}, v{s+6}")
        a(f"v_max_f32 v{m}, v{m}, v{s+7}")
    smax_reduce(P, [12, 13, 14, 15], "v_max_f32", 96)
    for qt in range(4):
        for r in range(4): a(f"v_sub_f32 v{NEGM(qt)+r}, 0, v{12+qt}")
        for r in range(8): a(f"v_sub_f32 v{S16(0,qt,r)}, v{S16(0,qt,r)}, v{12+qt}")
    assert NE == 4
    if not skew:
        a(f"s_waitcnt vmcnt({20 if sched else 14})")
        a("s_barrier")
    if not sched: a(call("L_uload"))
    P += flat(g)[:-1]
    if skew:
        a("v_add_u32 v7, 1, v7")
        a("s_waitcnt vmcnt(8)")
        a("ds_write_b32 v6, v7")
    else:
        a(f"s_waitcnt vmcnt({6 if sched else 12})")
        a("ds_write_b32 v6, v7")
    if sched:
        a(call("L_uproc"))
        a(call("L_uload"))
    a("s_waitcnt lgkmcnt(5)")
    st(P, 2)
    a(f"s_getpc_b64 {LINK}")
    P = fix_hazards(P)
    ev = flat(step_gaps(0, 'loop', opt)) + ["s_cbranch_scc1 L_tail"]
    od = flat(step_gaps(1, 'loop', opt)) + ["s_cbranch_scc0 L_loop"]
    fix_hazards(ev + od, insert=False, ctx=P, name='loop-entry')
    fix_hazards(ev + od, insert=False, ctx=ev + od, name='loop-back')
    B = [".p2align 6", "L_loop:"] + ev + od
    H = []; a = H.append
    a(f"s_cmp_gt_u32 s24, {2 if sched else 3}")
    lay = opt.get('asym', 0) and opt.get('lay', 1)
    if lay: a("s_cbranch_scc0 L_uproc")
    else:
        a("s_cbranch_scc1 L_hook_b")
        unit_proc(H, exact); unit_load(H, LD); flag_code(H)
    a("L_hook_b:")
    if opt.get('wb', 1) > 5:
        a(f"s_cmp_lg_u32 s24, {opt['wb']}")
        a("s_cbranch_scc1 L_hook_nb")
        a("s_or_b32 s3, s20, s29"); a("s_cmp_lg_u32 s3, 0")
        a("s_cbranch_scc1 L_loop")
        a("buffer_wbl2 sc1")
        a("s_branch L_loop")
        a("L_hook_nb:")
    if sched:
        a("s_cmp_eq_u32 s24, 3")
        a("s_cbranch_scc1 L_flag_n")
    a("s_bitcmp1_b32 s24, 0")
    a("s_cbranch_scc1 L_hook_c")
    a("s_add_u32 s100, s100, 0x4000")
    a("buffer_load_dwordx4 v[56:59], v1, s[4:7], s100 offen sc1")
    if not sched:
        a("s_cmp_eq_u32 s24, 4")
        a("s_cbranch_scc1 L_flag_n")
    a("s_branch L_loop")
    a("L_hook_c:")
    if opt.get('wb', 1) == 5:
        a("s_or_b32 s3, s20, s29"); a("s_cmp_lg_u32 s3, 0")
        a("s_cbranch_scc1 L_hook_nw")
        a("buffer_wbl2 sc1")
        a("L_hook_nw:")
    probe_check(H)
    a("s_cbranch_scc0 L_loop")
    a("s_cmp_lg_u32 s43, 0")
    a("s_cbranch_scc1 L_loop")
    a("s_branch L_poll")
    H = fix_hazards(H, ctx=od)
    T = ["L_tail:"]
    if opt.get('wb', 1) == 1: T += ["s_or_b32 s3, s20, s29", "s_cmp_lg_u32 s3, 0", "s_cbranch_scc1 L_nowb", "buffer_wbl2 sc1", "L_nowb:"]
    def epi_q(L, qt):
        for s in range(4):
            o = OT(qt, 2*s)
            for r in range(0, 8, 2): L.append(pk("v_pk_mul_f32", o+r, o+r, 20+qt, bsel=1))
            for r in range(0, 8, 2): L.append(f"v_cvt_pk_bf16_f32 v{o+r//2}, v{o+r}, v{o+r+1}")
            L.append(f"buffer_store_dwordx4 {vr(o)}, v4, s[16:19], s{31+qt} offen offset:{s*64} sc0 sc1")
    E = []
    if opt.get('tail2', 1):
        a = T.append
        lastg = flat(step_gaps(1, 'last', opt))
        valu = [x for x in lastg if x.startswith('v_exp') or x.startswith('v_cvt_pk')]
        reads = [x for x in lastg if x.startswith('ds_read')]
        p1 = PR(1, 1) + 3
        k = max(i for i, x in enumerate(valu) if x.startswith(f"v_cvt_pk_bf16_f32 v{p1},")) + 1
        sm = sum_mfmas(1, msum)
        pv = lambda qt: [m16(OT(qt, dt), ar(FR(8+dt)), vr(PR(1, qt)), vr(OT(qt, dt))) for dt in range(8)]
        T += reads + valu[:k] + [sm[0]]
        rest2 = valu[k:]
        for dt, m in enumerate(pv(0)):
            a(f"s_waitcnt lgkmcnt({7-dt})"); a(m)
            T += rest2[:2]; rest2 = rest2[2:]
        T += rest2
        x = pv(1)
        T += x[:4]
        a("v_add_f32 v12, v48, v49"); a("v_add_f32 v13, v50, v51")
        a("v_rcp_f32 v20, v12"); a("v_rcp_f32 v21, v13")
        T += x[4:] + [sm[1]]
        st(T, 3)
        epi_q(T, 0)
        T += pv(2)
        a("v_add_f32 v14, v52, v53"); a("v_add_f32 v15, v54, v55")
        a("v_rcp_f32 v22, v14"); a("v_rcp_f32 v23, v15")
        a(f"s_mov_b32 s30, {f2u(2.0**40):#x}")
        a("v_add_f32 v17, v12, v13"); a("v_add_f32 v18, v14, v15"); a("v_add_f32 v17, v17, v18")
        a("v_cmp_nlt_f32 vcc, v17, s30")
        epi_q(T, 1)
        a("s_cbranch_vccnz L_slow")
        T += pv(3)
        epi_q(T, 2); epi_q(T, 3)
        a = E.append
        a("L_epi:")
        lr = sum_final(E, msum)
        for qt in range(4): a(f"v_rcp_f32 v{20+qt}, v{lr[qt]}")
        for qt in range(4): epi_q(E, qt)
        a("s_endpgm")
        a = T.append
    else:
        T += flat(step_gaps(1, 'last', opt))
        a = T.append
        st(T, 3)
        a("L_epi:")
        lr = sum_final(T, msum)
        a(f"s_mov_b32 s30, {f2u(2.0**40):#x}")
        a(f"v_add_f32 v17, v{lr[0]}, v{lr[1]}")
        a(f"v_add_f32 v18, v{lr[2]}, v{lr[3]}")
        for qt in range(4): a(f"v_rcp_f32 v{20+qt}, v{lr[qt]}")
        a("v_add_f32 v17, v17, v18")
        a("v_cmp_nlt_f32 vcc, v17, s30")
        a("s_cmp_lg_u32 s35, 0")
        a("s_cbranch_scc1 L_fin")
        a("s_cbranch_vccnz L_slow")
        a("L_fin:")
        for qt in range(4):
            for s in range(4):
                o = OT(qt, 2*s)
                for r in range(0, 8, 2): a(pk("v_pk_mul_f32", o+r, o+r, 20+qt, bsel=1))
                for r in range(0, 8, 2): a(f"v_cvt_pk_bf16_f32 v{o+r//2}, v{o+r}, v{o+r+1}")
                a(f"buffer_store_dwordx4 {vr(o)}, v4, s[16:19], s{31+qt} offen offset:{s*64} sc0 sc1")
    if opt.get('stamp', 0):
        a("s_waitcnt vmcnt(0)")
        st(T, 5)
        st_store(T)
    a("L_end:")
    a("s_endpgm")
    T = fix_hazards(T, ctx=ev)
    X = ["L_spin:", "ds_read_b32 v9, v8", "s_waitcnt lgkmcnt(0)", "v_cmp_gt_u32 vcc, v7, v9", "s_cbranch_vccnz L_spin", "s_branch L_spin_ret"]
    X += ["L_wait:", "ds_read_b32 v9, v8", "s_waitcnt lgkmcnt(0)", "v_cmp_gt_u32 vcc, v12, v9", "s_cbranch_vccnz L_wait", f"s_setpc_b64 {LINK}"]
    if not lay:
        unit_setup(X); early_code(X, LD, opt.get('asym', 0))
    poll_code(X, opt)
    a = X.append
    a("L_redo:")
    a("s_mov_b32 s43, 1")
    a("s_mov_b32 s21, 0")
    a("L_redo_l:")
    a("s_and_b32 s23, s21, 3"); a("s_lshr_b32 s22, s21, 2"); a("s_and_b32 s22, s22, 63"); a("s_lshr_b32 s41, s21, 8")
    a(call("L_usetup")); a(call("L_uload")); a("s_waitcnt vmcnt(0)"); a(call("L_uproc"))
    a("s_add_u32 s21, s21, 1")
    a("s_cmp_lt_u32 s21, 512")
    a("s_cbranch_scc1 L_redo_l")
    a("s_lshr_b32 s41, s20, 1"); a("s_and_b32 s22, s20, 1"); a("s_lshl_b32 s22, s22, 3"); a("s_lshr_b32 s3, s29, 2"); a("s_add_u32 s22, s22, s3")
    a("s_add_u32 s22, s22, 16"); a("s_and_b32 s23, s29, 3")
    a(call("L_usetup"))
    a("s_waitcnt vmcnt(0)")
    a("s_branch L_go")
    X += slow_path(opt) + (["s_nop 7"] if E else []) + E
    X = fix_hazards(X)
    return P + B + H + T + X

def slow_path(opt):
    full = gen.main_kernel(dict(opt, stamp=0), ["s_nop 0"])
    return full[full.index("L_slow:"):]

def generate3(opt):
    full = build(opt)
    hdr = open(f"cdna_kernels/{NAME}.s.ref").read().split("; Override launch")[0]
    out = hdr
    out += "; One launch: the 32 workgroups of a KV head dequantise K/V cooperatively into d_ws (MFMA fragment order, bf16) while running flash attention.\n"
    out += f"; @launch grid=(256,1,1) block=(256,1,1) lds=132352\n"
    out += '.amdgcn_target "amdgcn-amd-amdhsa--gfx950"\n.text\n'
    out += f".globl {KMAIN}\n.p2align 8\n.type {KMAIN},@function\n{KMAIN}:\n" + fmt(full)
    out += '.section .rodata,"a"\n' + kd(KMAIN, 392, 256, 102)
    return out

if __name__ == "__main__":
    opt = {}
    path = f"cdna_kernels/{NAME}.s"
    for x in sys.argv[1:]:
        if x.startswith("-o"): path = x[2:]
        else:
            k, v = x.split("="); opt[k] = int(v)
    open(path, "w").write(generate3(opt))
    print("wrote", path)
```

```python
import sys
import gen
from gen import *
from gen2 import pk

LINK = "s[64:65]"
def call(lbl): return f"s_call_b64 {LINK}, {lbl}"
class Ctx: pass

def mkstamp(opt):
    mode = opt.get('stamp', 0)
    cols = {0: [], 1: [0, 6, 9, 1, 10, 2, 3, 5], 3: [0, 2, 3, 5, 11, 12], 4: [0, 7, 8, 9, 1, 10, 2, 5]}[mode]
    def st(L, k):
        if k in cols: L.append(f"s_memrealtime s[{44+2*cols.index(k)}:{45+2*cols.index(k)}]")
        if mode == 3 and k == 2: L.append(f"s_memtime s[{44+2*cols.index(11)}:{45+2*cols.index(11)}]")
        if mode == 3 and k == 3: L.append(f"s_memtime s[{44+2*cols.index(12)}:{45+2*cols.index(12)}]")
    def store(L):
        if not mode: return
        a = L.append
        a("s_waitcnt lgkmcnt(0)")
        a("s_lshl_b32 s77, s2, 2"); a("s_add_u32 s77, s77, s20"); a("s_lshl_b32 s76, s77, 7")
        a("s_add_u32 s72, s26, 0x1000000"); a("s_addc_u32 s73, s27, 0"); a("s_mov_b32 s74, 0x100000"); a("s_mov_b32 s75, 0x20000")
        a("v_mov_b32 v5, 0"); a("s_mov_b64 exec, 1")
        for c in range(13):
            n = cols.index(c) if c in cols else 0
            a(f"v_mov_b32 v6, s{44+2*n}"); a(f"v_mov_b32 v7, s{45+2*n}")
            a(f"buffer_store_dwordx2 v[6:7], v5, s[72:75], s76 offen offset:{8*c}")
            a("s_waitcnt vmcnt(0)")
    return st, store

SWAP = [0]
FMA = [0]
NOEX = [0]
def unit_setup(L):
    a = L.append
    a("L_usetup:")
    a("s_lshl_b32 s39, s22, 14")
    a("s_lshl_b32 s3, s23, 11")
    a("s_add_u32 s36, s39, s3")
    a("s_add_u32 s36, s36, s30")
    a("s_add_u32 s37, s36, 8192")
    a("s_lshl_b32 s38, s28, 12")
    a("s_mov_b32 s10, 0x800000"); a("s_mov_b32 s11, 0x20000")
    a("s_mov_b32 s74, 0x8000"); a("s_mov_b32 s75, 0x20000")
    a("s_mov_b32 s78, 0x8000"); a("s_mov_b32 s79, 0x20000")
    a("s_cmp_lg_u32 s41, 0")
    a("s_cbranch_scc1 L_usetup_v")
    a("s_mov_b32 s8, s82"); a("s_mov_b32 s9, s83")
    a("s_mov_b32 s72, s86"); a("s_mov_b32 s73, s87")
    a("s_mov_b32 s76, s88"); a("s_mov_b32 s77, s89")
    a("s_lshr_b32 s3, s22, 2"); a("s_lshl_b32 s3, s3, 8"); a("s_add_u32 s38, s38, s3")
    a("s_lshl_b32 s3, s23, 6"); a("s_add_u32 s39, s39, s3")
    a("s_add_u32 s40, s39, 4096")
    a("v_and_b32 v12, 3, v0"); a("v_bfe_u32 v13, v0, 2, 2"); a("v_lshrrev_b32 v14, 4, v0")
    a("v_lshlrev_b32 v10, 9, v12"); a("v_lshl_add_u32 v10, v14, 7, v10"); a("v_lshl_add_u32 v10, v13, 5, v10")
    a("v_lshlrev_b32 v5, 10, v14"); a("v_lshl_add_u32 v5, v13, 8, v5"); a("v_lshl_add_u32 v5, v12, 4, v5")
    a(f"s_setpc_b64 {LINK}")
    a("L_usetup_v:")
    a("s_mov_b32 s8, s84"); a("s_mov_b32 s9, s85")
    a("s_mov_b32 s72, s90"); a("s_mov_b32 s73, s91")
    a("s_mov_b32 s76, s92"); a("s_mov_b32 s77, s93")
    a("s_lshl_b32 s3, s22, 6"); a("s_add_u32 s38, s38, s3")
    a("s_lshl_b32 s3, s23, 3"); a("s_add_u32 s38, s38, s3")
    a("s_lshl_b32 s3, s23, 8"); a("s_add_u32 s39, s39, s3"); a("s_add_u32 s39, s39, 8192")
    a("v_and_b32 v12, 31, v0"); a("v_lshrrev_b32 v13, 5, v0")
    a("v_lshlrev_b32 v10, 13, v13"); a("v_lshl_add_u32 v10, v12, 4, v10")
    if SWAP[0]:
        a("v_lshrrev_b32 v14, 1, v12"); a("v_lshlrev_b32 v5, 4, v14")
        a("v_and_b32 v14, 1, v12"); a("v_lshl_add_u32 v5, v14, 12, v5")
        a("v_lshl_add_u32 v5, v13, 11, v5")
    else:
        a("v_lshrrev_b32 v14, 3, v12"); a("v_lshlrev_b32 v5, 11, v14")
        a("v_and_b32 v14, 1, v12"); a("v_lshl_add_u32 v5, v14, 10, v5")
        a("v_bfe_u32 v14, v12, 1, 2"); a("v_lshl_add_u32 v5, v14, 6, v5")
        a("v_lshl_add_u32 v5, v13, 5, v5")
    a(f"s_setpc_b64 {LINK}")

SCHED = [0]
def unit_load(L, LD):
    a = L.append
    a("L_uload:")
    a("s_cmp_lg_u32 s41, 0")
    a("s_cbranch_scc1 L_uload_v")
    a("v_bfe_u32 v12, v10, 1, 8")
    a("buffer_load_dwordx4 v[56:59], v12, s[72:75], s38 offen")
    a("buffer_load_dwordx4 v[60:63], v12, s[76:79], s38 offen")
    for kt in range(2):
        for hh in range(2): a(f"buffer_load_dwordx4 {vr(16+8*kt+4*hh)}, v10, s[8:11], s{36+kt} offen offset:{hh*16}{LD}")
    a("s_branch L_uload_e")
    a("L_uload_v:")
    a("v_lshrrev_b32 v12, 8, v10")
    a("v_and_b32 v12, 32, v12")
    a("buffer_load_dwordx2 v[56:57], v12, s[72:75], s38 offen")
    a("buffer_load_dwordx2 v[58:59], v12, s[76:79], s38 offen")
    for i in range(4): a(f"buffer_load_dwordx4 {vr(16+4*i)}, v10, s[8:11], s36 offen offset:{i*512}{LD}")
    a("L_uload_e:")
    a("s_add_u32 s36, s36, 0x40000"); a("s_add_u32 s37, s37, 0x40000"); a("s_add_u32 s38, s38, 1024")
    if SCHED[0] == 0:
        a("s_cmp_eq_u32 s24, 2")
        a("s_cbranch_scc1 L_flag_n")
    a(f"s_setpc_b64 {LINK}")

def early_code(L, LD, asym, part=None):
    a = L.append
    if part is not None:
        full = []; early_code(full, LD, asym)
        k = full.index(call("L_uload")) + 1
        if part == 0: L += full[:k] + ["s_branch L_early_2"]
        else: L += ["L_early_2:"] + full[k:]
        return
    a("L_early:")
    if not asym:
        a("s_and_b32 s22, s20, 1"); a("s_lshl_b32 s22, s22, 3"); a("s_lshr_b32 s3, s29, 2"); a("s_add_u32 s22, s22, s3")
        a("s_and_b32 s23, s29, 3")
        a(call("L_usetup")); a(call("L_uload")); a("s_waitcnt vmcnt(0)"); a(call("L_uproc"))
        a("s_setpc_b64 s[66:67]")
        return
    a("s_lshr_b32 s22, s29, 2"); a("s_and_b32 s23, s29, 3")
    a(call("L_usetup"))
    a(call("L_uload"))
    a("s_sub_u32 s3, s36, 0x20000"); a("s_sub_u32 s68, s37, 0x20000"); a("s_sub_u32 s69, s38, 512")
    a("s_cmp_lg_u32 s41, 0")
    a("s_cbranch_scc1 L_early_v")
    a("buffer_load_dwordx4 v[64:67], v12, s[72:75], s69 offen")
    a("buffer_load_dwordx4 v[68:71], v12, s[76:79], s69 offen")
    for kt in range(2):
        for hh in range(2): a(f"buffer_load_dwordx4 {vr(32+8*kt+4*hh)}, v10, s[8:11], s{(3, 68)[kt]} offen offset:{hh*16}{LD}")
    a("s_branch L_early_w")
    a("L_early_v:")
    a("buffer_load_dwordx2 v[64:65], v12, s[72:75], s69 offen")
    a("buffer_load_dwordx2 v[66:67], v12, s[76:79], s69 offen")
    for i in range(4): a(f"buffer_load_dwordx4 {vr(32+4*i)}, v10, s[8:11], s3 offen offset:{i*512}{LD}")
    a("L_early_w:")
    a("s_cmp_lg_u32 s42, 0")
    a("s_cbranch_scc1 L_early_x")
    a("s_barrier")
    a("L_early_x:")
    a("s_waitcnt vmcnt(6)")
    a(call("L_uproc"))
    a("s_sub_u32 s39, s39, 0x20000"); a("s_sub_u32 s40, s40, 0x20000")
    a("s_waitcnt vmcnt(2)")
    for i in range(0, 16, 2): a(f"v_pk_mov_b32 {vr(16+i,2)}, {vr(32+i,2)}, {vr(32+i,2)} op_sel:[0,1]")
    for i in range(0, 8, 2): a(f"v_pk_mov_b32 {vr(56+i,2)}, {vr(64+i,2)}, {vr(64+i,2)} op_sel:[0,1]")
    a(call("L_uproc"))
    a("s_sub_u32 s39, s39, 0x20000"); a("s_sub_u32 s40, s40, 0x20000")
    a("s_setpc_b64 s[66:67]")

def unit_proc(L, exact):
    a = L.append; T0 = 12
    a("L_uproc:")
    for i in range(16): a(f"v_cvt_f32_i32 v{16+i}, v{16+i}")
    a("s_cmp_lg_u32 s41, 0")
    a("s_cbranch_scc1 L_uproc_v")
    for j in range(4):
        a(f"v_lshlrev_b32 v{T0}, 16, v{60+j}"); a(f"v_and_b32 v{T0+1}, 0xffff0000, v{60+j}")
        a(f"v_lshlrev_b32 v{T0+2}, 16, v{56+j}"); a(f"v_and_b32 v{T0+3}, 0xffff0000, v{56+j}")
        if FMA[0] and not exact:
            a(f"v_pk_mul_f32 {vr(T0+2,2)}, {vr(T0+2,2)}, s[70:71]")
            a(f"v_pk_mul_f32 {vr(T0,2)}, {vr(T0,2)}, {vr(T0+2,2)}")
            for c in range(2): a(f"v_pk_fma_f32 {vr(16+8*c+2*j,2)}, {vr(16+8*c+2*j,2)}, {vr(T0+2,2)}, {vr(T0,2)} neg_lo:[0,0,1] neg_hi:[0,0,1]")
        else:
            for c in range(2): a(pk("v_pk_add_f32", 16+8*c+2*j, 16+8*c+2*j, T0, neg_b=True))
            if not exact: a(f"v_pk_mul_f32 {vr(T0+2,2)}, {vr(T0+2,2)}, s[70:71]")
            if exact:
                for c in range(2): round_pair(L, 16+8*c+2*j, 17+8*c+2*j, 60+j)
            for c in range(2): a(pk("v_pk_mul_f32", 16+8*c+2*j, 16+8*c+2*j, T0+2))
            if exact:
                for c in range(2):
                    b = 16 + 8*c + 2*j
                    round_pair(L, b, b+1, 60+j)
                    a(f"v_pk_mul_f32 {vr(b,2)}, {vr(b,2)}, s[70:71]")
        for c in range(2): a(f"v_cvt_pk_bf16_f32 v{16+8*c+j}, v{16+8*c+2*j}, v{17+8*c+2*j}")
    a("s_cmp_lg_u32 s42, 0")
    a("s_cbranch_scc1 L_uproc_km")
    a("buffer_store_dwordx4 v[16:19], v5, s[12:15], s39 offen")
    a("buffer_store_dwordx4 v[24:27], v5, s[12:15], s40 offen")
    a("s_branch L_uproc_e")
    a("L_uproc_km:")
    a("buffer_store_dwordx4 v[16:19], v5, s[12:15], s39 offen sc1")
    a("buffer_store_dwordx4 v[24:27], v5, s[12:15], s40 offen sc1")
    a("s_branch L_uproc_e")
    a("L_uproc_vm:")
    a("buffer_store_dwordx4 v[56:59], v5, s[12:15], s39 offen sc1")
    a(f"buffer_store_dwordx4 v[60:63], v5, s[12:15], s39 offen offset:{1024 if SWAP[0] else 16} sc1")
    a("s_branch L_uproc_e")
    a("L_uproc_v:")
    for j in range(2):
        a(f"v_lshlrev_b32 v{60+2*j}, 16, v{58+j}"); a(f"v_and_b32 v{61+2*j}, 0xffff0000, v{58+j}")
        a(f"v_lshlrev_b32 v{T0+2*j}, 16, v{56+j}"); a(f"v_and_b32 v{T0+1+2*j}, 0xffff0000, v{56+j}")
    if FMA[0] and not exact:
        for j in range(2): a(f"v_pk_mul_f32 {vr(60+2*j,2)}, {vr(60+2*j,2)}, {vr(T0+2*j,2)}")
        for i in range(4):
            sel = "op_sel:[0,1,1] op_sel_hi:[1,1,1]" if i % 2 else "op_sel_hi:[1,0,0]"
            for rr in (0, 2): a(f"v_pk_fma_f32 {vr(16+4*i+rr,2)}, {vr(16+4*i+rr,2)}, {vr(T0+(i//2)*2,2)}, {vr(60+(i//2)*2,2)} {sel} neg_lo:[0,0,1] neg_hi:[0,0,1]")
    else:
        for i in range(4):
            for rr in (0, 2): a(pk("v_pk_add_f32", 16+4*i+rr, 16+4*i+rr, 60+i, bsel=1, neg_b=True))
        if exact:
            for i in range(4):
                for rr in (0, 2): round_pair(L, 16+4*i+rr, 17+4*i+rr, 56 + rr//2)
        for i in range(4):
            for rr in (0, 2): a(pk("v_pk_mul_f32", 16+4*i+rr, 16+4*i+rr, T0+i, bsel=1))
    for rr in range(4):
        o = (56, 60, 58, 62)[rr]
        a(f"v_cvt_pk_bf16_f32 v{o}, v{16+rr}, v{20+rr}")
        a(f"v_cvt_pk_bf16_f32 v{o+1}, v{24+rr}, v{28+rr}")
    a("s_cmp_lg_u32 s42, 0")
    for x in (56, 57, 60, 61): a(f"v_permlane32_swap_b32 v{x}, v{x+2}")
    a("s_cbranch_scc1 L_uproc_vm")
    a("buffer_store_dwordx4 v[56:59], v5, s[12:15], s39 offen")
    a(f"buffer_store_dwordx4 v[60:63], v5, s[12:15], s39 offen offset:{1024 if SWAP[0] else 16}")
    a("L_uproc_e:")
    a("s_add_u32 s39, s39, 0x40000"); a("s_add_u32 s40, s40, 0x40000")
    a("s_cmp_eq_u32 s24, 1" if SCHED[0] else "s_bitcmp1_b32 6, s24")
    a("s_cbranch_scc1 L_uload")
    a(f"s_setpc_b64 {LINK}")

def flag_code(L):
    a = L.append
    a("L_flag_n:")
    a("s_add_u32 s101, s101, 0x4000")
    a("L_flag:")
    a("v_mov_b32 v12, s62"); a("v_mov_b32 v13, s63"); a("v_mov_b32 v14, 0")
    if not NOEX[0]: a("s_mov_b64 exec, 1")
    a("buffer_store_dwordx2 v[12:13], v14, s[4:7], s101 offen")
    a("s_cmp_eq_u32 s42, 0")
    a("s_cbranch_scc1 L_flag_e")
    a("v_mov_b32 v15, 0x2000")
    a("v_or_b32 v13, 0xf0000000, v13")
    a("buffer_store_dwordx2 v[12:13], v15, s[4:7], s101 offen sc1")
    a("L_flag_e:")
    if not NOEX[0]: a("s_mov_b64 exec, -1")
    a(f"s_setpc_b64 {LINK}")

def window(L, r, dst, lo="s[60:61]"):
    a = L.append
    l0, l1 = lo[2:-1].split(":")
    a(f"v_subrev_co_u32 v{r}, vcc, s{l0}, v{r}")
    a(f"v_mov_b32 v15, s{l1}")
    a(f"v_subb_co_u32 v{r+1}, vcc, v{r+1}, v15, vcc")
    a(f"v_lshrrev_b32 v{r}, 24, v{r}")
    a(f"v_or_b32 v{r}, v{r}, v{r+1}")

def probe_check(L):
    window(L, 56, None); window(L, 58, None)
    L.append("v_or_b32 v56, v56, v58")
    L.append("v_cmp_ne_u32 vcc, 0, v56")
    L.append("s_cmp_lg_u64 vcc, 0")

def poll_code(L, opt):
    a = L.append
    a("L_poll:")
    a("s_mov_b32 s21, 0")
    a("s_mov_b32 s68, s60"); a("s_or_b32 s69, s61, 0xf0000000")
    a("L_poll_l:")
    a("s_add_u32 s3, s100, 0x2000")
    a("buffer_load_dwordx4 v[56:59], v1, s[4:7], s100 offen sc1")
    a("buffer_load_dwordx4 v[60:63], v1, s[4:7], s3 offen sc1")
    a("s_waitcnt vmcnt(0)")
    window(L, 56, None); window(L, 58, None); window(L, 60, None, "s[68:69]"); window(L, 62, None, "s[68:69]")
    a("v_min_u32 v56, v56, v60")
    a("v_min_u32 v58, v58, v62")
    a("v_min_u32 v60, v60, v62")
    a("v_or_b32 v56, v56, v58")
    a("v_cmp_ne_u32 vcc, 0, v56")
    a("v_cmp_eq_u32 s[96:97], 0, v60")
    a("s_or_b32 s3, s42, s24")
    a("s_cselect_b64 s[96:97], 0, s[96:97]")
    a("s_cmp_lg_u64 s[96:97], 0")
    a("s_cbranch_scc1 L_poll_t")
    a("s_cmp_lg_u64 vcc, 0")
    a("s_cbranch_scc0 L_poll_e")
    a("s_add_u32 s21, s21, 1")
    a("s_cmp_lg_u32 s3, 0")
    a("s_cbranch_scc1 L_poll_w")
    a(f"s_cmp_lt_u32 s21, {opt.get('fastpolls', 12)}")
    a("s_cbranch_scc1 L_poll_w")
    a("L_poll_t:")
    a("s_mov_b32 s42, 1")
    a(f"s_mov_b64 s[96:97], {LINK}")
    if opt.get('asym', 0):
        a("s_bitcmp1_b32 s20, 0")
        a("s_cbranch_scc1 L_poll_f")
    a("s_call_b64 s[66:67], L_early")
    a("s_mov_b32 s68, s60"); a("s_or_b32 s69, s61, 0xf0000000")
    a("s_waitcnt vmcnt(0)")
    a("L_poll_f:")
    a(call("L_flag"))
    a(f"s_mov_b64 {LINK}, s[96:97]")
    a("L_poll_w:")
    a("s_sleep 1")
    a("s_cmp_lt_u32 s21, s25")
    a("s_cbranch_scc1 L_poll_l")
    a("s_cmp_eq_u32 s21, s21")
    a("L_poll_e:")
    a(f"s_setpc_b64 {LINK}")


def build(opt):
    opt['msum'] = msum = 4; opt['fsync'] = 1; opt['fused'] = 1; opt['hooks'] = 1
    gen.SWAP_EVEN[0] = 1
    SCHED[0] = sched = opt.get('sched', 0)
    opt.setdefault('wb', 31)
    opt['hmask'] = (0x3e if sched else 0xc3e) | ((1 << opt['wb']) if opt['wb'] > 5 else 0)
    exact = opt.get('exact', 0)
    LD = " nt" if opt.get('ldnt', 0) else ""
    st, st_store = mkstamp(opt)
    P = []; a = P.append
    a("s_cmp_ge_u32 s2, 256")
    a("s_cbranch_scc1 L_end")
    st(P, 0)
    a("s_load_dwordx16 s[80:95], s[0:1], 0")
    a("s_load_dwordx4 s[96:99], s[0:1], 64")
    a("s_memrealtime s[62:63]")
    a("v_lshrrev_b32 v5, 6, v0")
    a("v_and_b32 v0, 63, v0")
    a("v_readfirstlane_b32 s20, v5")
    a("v_lshlrev_b32 v1, 4, v0")
    a("s_and_b32 s28, s2, 7")
    a("s_lshr_b32 s29, s2, 3")
    a("s_lshl_b32 s30, s28, 20")
    a("s_lshr_b32 s41, s20, 1")
    a(f"s_mov_b32 s70, {f2u(CSCALE):#x}"); a("s_mov_b32 s71, s70")
    a("s_getreg_b32 s21, hwreg(HW_REG_XCC_ID, 0, 4)")
    a("s_mov_b32 s43, 0"); a("s_mov_b32 s24, 0"); a("s_mov_b32 s42, 0")
    a("s_lshl_b32 s31, s28, 5"); a("s_add_u32 s31, s31, s29"); a("s_lshl_b32 s31, s31, 16")
    a("s_lshl_b32 s3, s20, 14"); a("s_add_u32 s31, s31, s3")
    a("s_add_u32 s32, s31, 4096"); a("s_add_u32 s33, s31, 8192"); a("s_add_u32 s34, s31, 12288")
    a("v_and_b32 v6, 15, v0"); a("v_lshrrev_b32 v7, 4, v0")
    a("v_lshlrev_b32 v4, 8, v6"); a("v_lshl_add_u32 v4, v7, 4, v4")
    a("s_waitcnt lgkmcnt(0)")
    st(P, 6)
    def qloads(qts):
        for qt in qts:
            for ks in range(4): a(f"buffer_load_dwordx4 {ar(QF(qt,ks))}, v4, s[16:19], s{31+qt} offen offset:{ks*64}{LD}")
    a("s_add_u32 s12, s98, s30"); a("s_addc_u32 s13, s99, 0"); a("s_mov_b32 s14, 0x100000"); a("s_mov_b32 s15, 0x20000")
    srd(P, 16, 80, 81, 16 << 20)
    a("s_mov_b32 s26, s98"); a("s_mov_b32 s27, s99")
    a("s_add_u32 s4, s98, 0x800000"); a("s_addc_u32 s5, s99, 0"); a("s_mov_b32 s6, 0xc000"); a("s_mov_b32 s7, 0x20000")
    if opt.get('tlb', 0):
        a("v_mov_b32 v40, 0")
        a("s_mov_b64 exec, 1")
        a("buffer_load_dword v41, v40, s[12:15], 0 offen")
        a("buffer_load_dword v42, v40, s[4:7], 0 offen")
        a("buffer_load_dword v43, v40, s[16:19], s31 offen")
        if opt['tlb'] > 1:
            srd(P, 8, 94, 95, 16 << 20)
            a("buffer_load_dword v44, v40, s[8:11], s31 offen")
        a("s_mov_b64 exec, -1")
    if opt.get('asym', 0):
        if opt.get('lay', 1):
            a("s_bitcmp1_b32 s20, 0")
            a("s_cbranch_scc1 L_oddw")
            a("s_call_b64 s[66:67], L_early")
            if opt.get('bar2', 0): a("s_barrier")
            a("s_branch L_odd")
            early_code(P, LD, 1, part=0); unit_setup(P); unit_load(P, LD); early_code(P, LD, 1, part=1); unit_proc(P, exact); flag_code(P)
            a("L_oddw:")
            a("s_lshr_b32 s22, s29, 2"); a("s_add_u32 s22, s22, 24"); a("s_and_b32 s23, s29, 3")
            a(call("L_usetup"))
            a("s_barrier")
            if opt.get('bar2', 0):
                qloads(range(opt['bar2']))
                a("s_barrier")
                qloads(range(opt['bar2'], opt.get('qa', 2)))
                a("s_branch L_odd2")
            a("L_odd:")
        else:
            a("s_bitcmp1_b32 s20, 0")
            a("s_cbranch_scc0 L_even")
            a("s_lshr_b32 s22, s29, 2"); a("s_add_u32 s22, s22, 24"); a("s_and_b32 s23, s29, 3")
            a(call("L_usetup"))
            a("s_barrier")
            a("s_branch L_odd")
            a("L_even:")
            a("s_call_b64 s[66:67], L_early")
            st(P, 8)
            a("L_odd:")
    else:
        a("s_call_b64 s[66:67], L_early")
        st(P, 8)
    skew = opt.get('skew', 0)
    rest = []
    NE = 4
    if skew:
        a("v_lshlrev_b32 v6, 2, v0"); a("v_add_u32 v6, 0x20100, v6")
        a("v_and_b32 v8, 3, v0"); a("v_lshl_add_u32 v8, v8, 8, v6")
        a("s_lshl_b32 s3, s20, 8"); a("v_add_u32 v6, s3, v6")
        a("v_mov_b32 v7, 0")
        a("ds_write_b32 v6, v7")
        a("s_waitcnt lgkmcnt(0)")
        a("s_barrier")
        a("s_cmp_lg_u32 s41, 0")
        a("s_cbranch_scc1 L_noq")
        qloads(range(4))
        a("L_noq:")
        a("s_mov_b32 s35, 0"); a(f"s_mov_b32 s25, {opt.get('slowpolls', 2048)}")
        a("s_lshl_b32 s100, s28, 10")
        a("s_lshl_b32 s101, s29, 2"); a("s_add_u32 s101, s101, s20"); a("s_lshl_b32 s101, s101, 3"); a("s_add_u32 s101, s101, s100")
        a("s_add_u32 s21, s21, 1"); a("s_lshl_b32 s21, s21, 28"); a("s_and_b32 s63, s63, 0x0fffffff"); a("s_or_b32 s63, s63, s21")
        a("s_sub_u32 s60, s62, 2000"); a("s_subb_u32 s61, s63, 0")
        a("s_cmp_lg_u32 s41, 0")
        a("s_cbranch_scc1 L_w0")
        a("s_waitcnt vmcnt(16)")
        a("s_branch L_w1")
        a("L_w0:")
        a("s_waitcnt vmcnt(0)")
        a("L_w1:")
        st(P, 9)
        a(call("L_flag"))
        a("s_cmp_eq_u32 s41, 0")
        a("s_cbranch_scc1 L_noq2")
        qloads(range(opt.get('ql1', 2)))
        a("L_noq2:")
        a("v_mov_b32 v3, v1")
        for i in range(128, 256): a(f"v_mov_b32 v{i}, 0")
        sum_init(P, msum)
        a("v_lshrrev_b32 v7, 1, v0"); a("v_and_b32 v7, 1, v7"); a("v_sub_u32 v15, 2, v7")
        a("v_mov_b32 v7, 1"); a("s_cmp_eq_u32 s41, 0"); a("s_cselect_b64 vcc, -1, 0"); a("v_cndmask_b32 v7, v7, v15, vcc")
        a("v_mov_b32 v2, v15")
        a("buffer_load_dwordx4 v[56:59], v1, s[4:7], s100 offen sc1")
        a("s_waitcnt vmcnt(0)")
        probe_check(P)
        a("s_cbranch_scc0 L_go")
        a(call("L_poll"))
        a("s_cbranch_scc1 L_redo")
        a("L_go:")
        st(P, 1)
        a("s_mov_b32 s25, 0x100000")
        a("s_lshl_b32 s22, s20, 12")
        def grp(first, n):
            r = [] if first else ["s_add_u32 s22, s22, 0x4000"]
            return r + ["s_and_b32 m0, s22, 0x1ffff", "s_nop 0"] + [f"buffer_load_dwordx4 v1, s[12:15], s22 offen offset:{k*1024} sc1 lds" for k in range(n)]
        a("s_cmp_lg_u32 s41, 0")
        a("s_cbranch_scc1 L_go_v")
        for t in range(2): P += grp(t == 0, 4)
        a("s_waitcnt vmcnt(0)")
        a("ds_write_b32 v6, v7")
        a("s_branch L_go_j")
        a("L_go_v:")
        P += grp(True, 4)
        q1 = opt.get('ql1', 2)
        qloads(range(q1, q1 + 1))
        a("s_waitcnt vmcnt(4)")
        a("ds_write_b32 v6, v7")
        qloads(range(q1 + 1, 4))
        for t in (1, 2): P += grp(False, 4)
        a("s_waitcnt vmcnt(8)")
        a("L_go_j:")
        srd(P, 16, 94, 95, 16 << 20)
        a("v_mov_b32 v12, v2")
        a(call("L_wait"))
        for t in range(3):
            x = grp(False, 4 if t < 2 else 2)
            rest += [x[:4]] + [[y] for y in x[4:]]
        st(P, 10)
        for f in range(8): a(f"ds_read_b128 {ar(FR(f))}, v3 offset:{f*1024}")
    else:
        QA = opt.get('qa', 2)
        qloads(range(QA))
        a("L_odd2:")
        if opt.get('cpf', 0):
            a("s_lshl_b32 s3, s29, 2"); a("s_add_u32 s3, s3, s20"); a("s_xor_b32 s3, s3, 1")
            a(f"s_cmp_ge_u32 s3, {4*opt['cpf']}"); a("s_cbranch_scc1 L_nopf")
            a("s_and_b32 s3, s3, 3"); a("s_cmp_lg_u32 s3, 0"); a("s_cbranch_scc1 L_nopf")
            a("s_getpc_b64 s[68:69]")
            a("s_lshl_b32 s3, s29, 10"); a("s_add_u32 s68, s68, s3"); a("s_addc_u32 s69, s69, 0")
            a("v_mov_b32 v41, s69"); a("v_add_co_u32 v40, vcc, s68, v1"); a("v_addc_co_u32 v41, vcc, 0, v41, vcc")
            a("global_load_dwordx4 v[44:47], v[40:41], off")
            a("L_nopf:")
        a("s_mov_b32 s35, 0"); a(f"s_mov_b32 s25, {opt.get('slowpolls', 2048)}")
        a("s_lshl_b32 s100, s28, 10")
        a("s_lshl_b32 s101, s29, 2"); a("s_add_u32 s101, s101, s20"); a("s_lshl_b32 s101, s101, 3"); a("s_add_u32 s101, s101, s100")
        a("s_add_u32 s21, s21, 1"); a("s_lshl_b32 s21, s21, 28"); a("s_and_b32 s63, s63, 0x0fffffff"); a("s_or_b32 s63, s63, s21")
        a("s_sub_u32 s60, s62, 2000"); a("s_subb_u32 s61, s63, 0")
        a(f"s_waitcnt vmcnt({4*QA})")
        st(P, 9)
        a(call("L_flag"))
        a("buffer_load_dwordx4 v[56:59], v1, s[4:7], s100 offen sc1")
        qloads(range(QA, 4))
        srd(P, 16, 94, 95, 16 << 20)
        a("v_lshlrev_b32 v6, 2, v0"); a("v_add_u32 v6, 0x20100, v6")
        a("v_and_b32 v8, 3, v0"); a("v_lshl_add_u32 v8, v8, 8, v6")
        a("s_lshl_b32 s3, s20, 8"); a("v_add_u32 v6, s3, v6")
        a("v_mov_b32 v7, 0")
        a("ds_write_b32 v6, v7")
        a("v_mov_b32 v3, v1")
        for i in range(128, 256): a(f"v_mov_b32 v{i}, 0")
        sum_init(P, msum)
        a("v_mov_b32 v7, 1")
        a(f"s_waitcnt vmcnt({16-4*QA})")
        probe_check(P)
        a("s_cbranch_scc0 L_go")
        a(call("L_poll"))
        a("s_cbranch_scc1 L_redo")
        a("L_go:")
        st(P, 1)
        a("s_mov_b32 s25, 0x100000")
        a("s_lshl_b32 s22, s20, 12")
        if opt.get('rot', 0):
            a("s_and_b32 s99, s29, 15"); a("s_lshl_b32 s99, s99, 14")
        def dma_hdr(first=False):
            r = [] if first else ["s_add_u32 s22, s22, 0x4000"]
            if opt.get('rot', 0): return r + ["s_add_u32 s23, s22, s99", "s_and_b32 s23, s23, 0x3ffff", "s_and_b32 m0, s22, 0x1ffff", "s_nop 0"]
            return r + ["s_and_b32 s23, s22, 0xfffff", "s_and_b32 m0, s22, 0x1ffff", "s_nop 0"]
        dma = lambda k: f"buffer_load_dwordx4 v1, s[12:15], s23 offen offset:{k*1024} sc1 lds"
        NE = opt.get('ne', 4)
        if opt.get('oddfirst', 0):
            a("s_bitcmp0_b32 s20, 0")
            a("s_cbranch_scc1 L_go_e")
            a("s_sub_u32 s22, s22, 0x1000")
            for stp in range(2):
                P += dma_hdr(True) + [dma(k) for k in range(4)]
                a("s_add_u32 s22, s22, 0x1000")
                P += dma_hdr(True) + [dma(k) for k in range(4)]
                if stp == 0: a("s_add_u32 s22, s22, 0x3000")
            for stp in range(2): P += dma_hdr() + [dma(k) for k in range(4)]
            a("s_waitcnt vmcnt(16) lgkmcnt(0)")
            a("s_branch L_go_j")
            a("L_go_e:")
            a("s_add_u32 s22, s22, 0x4000")
            for stp in range(2): P += dma_hdr() + [dma(k) for k in range(4)]
            a("s_waitcnt vmcnt(8) lgkmcnt(0)")
            a("L_go_j:")
        else:
            for stp in range(NE): P += dma_hdr(stp == 0) + [dma(k) for k in range(4)]
            if sched: a(call("L_uload"))
            a(f"s_waitcnt vmcnt({4*NE-4+6*sched}) lgkmcnt(0)")
        a("s_barrier")
        st(P, 10)
        for f in range(8): a(f"ds_read_b128 {ar(FR(f))}, v3 offset:{f*1024}")
        for stp in range(NE, 6): rest += [dma_hdr() + [dma(0)]] + [[dma(k)] for k in range(1, 4 if stp < 5 else 2)]
    g = step_gaps(1, 'first', opt)
    for i in range(32):
        if opt.get('chain', 0):
            if i % 16 < 4: a(f"s_waitcnt lgkmcnt({7 - (i//16)*4 - i % 16})")
        elif i % 4 == 0: a(f"s_waitcnt lgkmcnt({7 - i//4})")
        a(g[i][0]); g[i][0] = None
        if i % 2 == 1 and rest and i >= 32 - 2*len(rest) - (8 if NE > 2 else 4): P += rest.pop(0)
    assert not rest
    if skew:
        a("v_add_u32 v7, s41, v7")
        a("s_waitcnt vmcnt(10)")
        a("ds_write_b32 v6, v7")
    for qt in range(4):
        s = SB(0, qt); m = 12 + qt
        a(f"v_max3_f32 v{m}, v{s}, v{s+1}, v{s+2}")
        a(f"v_max3_f32 v{m}, v{m}, v{s+3}, v{s+4}")
        a(f"v_max3_f32 v{m}, v{m}, v{s+5}, v{s+6}")
        a(f"v_max_f32 v{m}, v{m}, v{s+7}")
    smax_reduce(P, [12, 13, 14, 15], "v_max_f32", 96)
    for qt in range(4):
        for r in range(4): a(f"v_sub_f32 v{NEGM(qt)+r}, 0, v{12+qt}")
        for r in range(8): a(f"v_sub_f32 v{S16(0,qt,r)}, v{S16(0,qt,r)}, v{12+qt}")
    assert NE == 4
    if not skew:
        a(f"s_waitcnt vmcnt({20 if sched else 14})")
        a("s_barrier")
    if not sched: a(call("L_uload"))
    P += flat(g)[:-1]
    if skew:
        a("v_add_u32 v7, 1, v7")
        a("s_waitcnt vmcnt(8)")
        a("ds_write_b32 v6, v7")
    else:
        a(f"s_waitcnt vmcnt({6 if sched else 12})")
        a("ds_write_b32 v6, v7")
    if sched:
        a(call("L_uproc"))
        a(call("L_uload"))
    a("s_waitcnt lgkmcnt(5)")
    st(P, 2)
    a(f"s_getpc_b64 {LINK}")
    P = fix_hazards(P)
    ev = flat(step_gaps(0, 'loop', opt)) + ["s_cbranch_scc1 L_tail"]
    od = flat(step_gaps(1, 'loop', opt)) + ["s_cbranch_scc0 L_loop"]
    fix_hazards(ev + od, insert=False, ctx=P, name='loop-entry')
    fix_hazards(ev + od, insert=False, ctx=ev + od, name='loop-back')
    B = [".p2align 6", "L_loop:"] + ev + od
    H = []; a = H.append
    a(f"s_cmp_gt_u32 s24, {2 if sched else 3}")
    lay = opt.get('asym', 0) and opt.get('lay', 1)
    if lay: a("s_cbranch_scc0 L_uproc")
    else:
        a("s_cbranch_scc1 L_hook_b")
        unit_proc(H, exact); unit_load(H, LD); flag_code(H)
    a("L_hook_b:")
    if opt.get('wb', 1) > 5:
        a(f"s_cmp_lg_u32 s24, {opt['wb']}")
        a("s_cbranch_scc1 L_hook_nb")
        a("s_or_b32 s3, s20, s29"); a("s_cmp_lg_u32 s3, 0")
        a("s_cbranch_scc1 L_loop")
        a("buffer_wbl2 sc1")
        a("s_branch L_loop")
        a("L_hook_nb:")
    if sched:
        a("s_cmp_eq_u32 s24, 3")
        a("s_cbranch_scc1 L_flag_n")
    a("s_bitcmp1_b32 s24, 0")
    a("s_cbranch_scc1 L_hook_c")
    a("s_add_u32 s100, s100, 0x4000")
    a("buffer_load_dwordx4 v[56:59], v1, s[4:7], s100 offen sc1")
    if not sched:
        a("s_cmp_eq_u32 s24, 4")
        a("s_cbranch_scc1 L_flag_n")
    a("s_branch L_loop")
    a("L_hook_c:")
    if opt.get('wb', 1) == 5:
        a("s_or_b32 s3, s20, s29"); a("s_cmp_lg_u32 s3, 0")
        a("s_cbranch_scc1 L_hook_nw")
        a("buffer_wbl2 sc1")
        a("L_hook_nw:")
    probe_check(H)
    a("s_cbranch_scc0 L_loop")
    a("s_cmp_lg_u32 s43, 0")
    a("s_cbranch_scc1 L_loop")
    a("s_branch L_poll")
    H = fix_hazards(H, ctx=od)
    T = ["L_tail:"]
    if opt.get('wb', 1) == 1: T += ["s_or_b32 s3, s20, s29", "s_cmp_lg_u32 s3, 0", "s_cbranch_scc1 L_nowb", "buffer_wbl2 sc1", "L_nowb:"]
    def epi_q(L, qt):
        for s in range(4):
            o = OT(qt, 2*s)
            for r in range(0, 8, 2): L.append(pk("v_pk_mul_f32", o+r, o+r, 20+qt, bsel=1))
            for r in range(0, 8, 2): L.append(f"v_cvt_pk_bf16_f32 v{o+r//2}, v{o+r}, v{o+r+1}")
            L.append(f"buffer_store_dwordx4 {vr(o)}, v4, s[16:19], s{31+qt} offen offset:{s*64} sc0 sc1")
    E = []
    if opt.get('tail2', 1):
        a = T.append
        lastg = flat(step_gaps(1, 'last', opt))
        valu = [x for x in lastg if x.startswith('v_exp') or x.startswith('v_cvt_pk')]
        reads = [x for x in lastg if x.startswith('ds_read')]
        p1 = PR(1, 1) + 3
        k = max(i for i, x in enumerate(valu) if x.startswith(f"v_cvt_pk_bf16_f32 v{p1},")) + 1
        sm = sum_mfmas(1, msum)
        pv = lambda qt: [m16(OT(qt, dt), ar(FR(8+dt)), vr(PR(1, qt)), vr(OT(qt, dt))) for dt in range(8)]
        T += reads + valu[:k] + [sm[0]]
        rest2 = valu[k:]
        for dt, m in enumerate(pv(0)):
            a(f"s_waitcnt lgkmcnt({7-dt})"); a(m)
            T += rest2[:2]; rest2 = rest2[2:]
        T += rest2
        x = pv(1)
        T += x[:4]
        a("v_add_f32 v12, v48, v49"); a("v_add_f32 v13, v50, v51")
        a("v_rcp_f32 v20, v12"); a("v_rcp_f32 v21, v13")
        T += x[4:] + [sm[1]]
        st(T, 3)
        epi_q(T, 0)
        T += pv(2)
        a("v_add_f32 v14, v52, v53"); a("v_add_f32 v15, v54, v55")
        a("v_rcp_f32 v22, v14"); a("v_rcp_f32 v23, v15")
        a(f"s_mov_b32 s30, {f2u(2.0**40):#x}")
        a("v_add_f32 v17, v12, v13"); a("v_add_f32 v18, v14, v15"); a("v_add_f32 v17, v17, v18")
        a("v_cmp_nlt_f32 vcc, v17, s30")
        epi_q(T, 1)
        a("s_cbranch_vccnz L_slow")
        T += pv(3)
        epi_q(T, 2); epi_q(T, 3)
        a = E.append
        a("L_epi:")
        lr = sum_final(E, msum)
        for qt in range(4): a(f"v_rcp_f32 v{20+qt}, v{lr[qt]}")
        for qt in range(4): epi_q(E, qt)
        a("s_endpgm")
        a = T.append
    else:
        T += flat(step_gaps(1, 'last', opt))
        a = T.append
        st(T, 3)
        a("L_epi:")
        lr = sum_final(T, msum)
        a(f"s_mov_b32 s30, {f2u(2.0**40):#x}")
        a(f"v_add_f32 v17, v{lr[0]}, v{lr[1]}")
        a(f"v_add_f32 v18, v{lr[2]}, v{lr[3]}")
        for qt in range(4): a(f"v_rcp_f32 v{20+qt}, v{lr[qt]}")
        a("v_add_f32 v17, v17, v18")
        a("v_cmp_nlt_f32 vcc, v17, s30")
        a("s_cmp_lg_u32 s35, 0")
        a("s_cbranch_scc1 L_fin")
        a("s_cbranch_vccnz L_slow")
        a("L_fin:")
        for qt in range(4):
            for s in range(4):
                o = OT(qt, 2*s)
                for r in range(0, 8, 2): a(pk("v_pk_mul_f32", o+r, o+r, 20+qt, bsel=1))
                for r in range(0, 8, 2): a(f"v_cvt_pk_bf16_f32 v{o+r//2}, v{o+r}, v{o+r+1}")
                a(f"buffer_store_dwordx4 {vr(o)}, v4, s[16:19], s{31+qt} offen offset:{s*64} sc0 sc1")
    if opt.get('stamp', 0):
        a("s_waitcnt vmcnt(0)")
        st(T, 5)
        st_store(T)
    a("L_end:")
    a("s_endpgm")
    T = fix_hazards(T, ctx=ev)
    X = ["L_spin:", "ds_read_b32 v9, v8", "s_waitcnt lgkmcnt(0)", "v_cmp_gt_u32 vcc, v7, v9", "s_cbranch_vccnz L_spin", "s_branch L_spin_ret"]
    X += ["L_wait:", "ds_read_b32 v9, v8", "s_waitcnt lgkmcnt(0)", "v_cmp_gt_u32 vcc, v12, v9", "s_cbranch_vccnz L_wait", f"s_setpc_b64 {LINK}"]
    if not lay:
        unit_setup(X); early_code(X, LD, opt.get('asym', 0))
    poll_code(X, opt)
    a = X.append
    a("L_redo:")
    a("s_mov_b32 s43, 1")
    a("s_mov_b32 s21, 0")
    a("L_redo_l:")
    a("s_and_b32 s23, s21, 3"); a("s_lshr_b32 s22, s21, 2"); a("s_and_b32 s22, s22, 63"); a("s_lshr_b32 s41, s21, 8")
    a(call("L_usetup")); a(call("L_uload")); a("s_waitcnt vmcnt(0)"); a(call("L_uproc"))
    a("s_add_u32 s21, s21, 1")
    a("s_cmp_lt_u32 s21, 512")
    a("s_cbranch_scc1 L_redo_l")
    a("s_lshr_b32 s41, s20, 1"); a("s_and_b32 s22, s20, 1"); a("s_lshl_b32 s22, s22, 3"); a("s_lshr_b32 s3, s29, 2"); a("s_add_u32 s22, s22, s3")
    a("s_add_u32 s22, s22, 16"); a("s_and_b32 s23, s29, 3")
    a(call("L_usetup"))
    a("s_waitcnt vmcnt(0)")
    a("s_branch L_go")
    X += slow_path(opt) + (["s_nop 7"] if E else []) + E
    X = fix_hazards(X)
    return P + B + H + T + X

def slow_path(opt):
    full = gen.main_kernel(dict(opt, stamp=0), ["s_nop 0"])
    return full[full.index("L_slow:"):]

def generate3(opt):
    full = build(opt)
    hdr = open(f"cdna_kernels/{NAME}.s.ref").read().split("; Override launch")[0]
    out = hdr
    out += "; One launch: the 32 workgroups of a KV head dequantise K/V cooperatively into d_ws (MFMA fragment order, bf16) while running flash attention.\n"
    out += f"; @launch grid=(256,1,1) block=(256,1,1) lds=132352\n"
    out += '.amdgcn_target "amdgcn-amd-amdhsa--gfx950"\n.text\n'
    out += f".globl {KMAIN}\n.p2align 8\n.type {KMAIN},@function\n{KMAIN}:\n" + fmt(full)
    out += '.section .rodata,"a"\n' + kd(KMAIN, 392, 256, 102)
    return out

if __name__ == "__main__":
    opt = {}
    path = f"cdna_kernels/{NAME}.s"
    for x in sys.argv[1:]:
        if x.startswith("-o"): path = x[2:]
        else:
            k, v = x.split("="); opt[k] = int(v)
    open(path, "w").write(generate3(opt))
    print("wrote", path)
```

```python
import sys
import gen, gen3
from gen import vr, ar, m16, srd, f2u, CSCALE, NAME, KMAIN, fmt, kd, smax_reduce, cost, flat
from gen2 import pk
from gen3 import LINK, call, mkstamp, unit_setup, unit_load, unit_proc, early_code, flag_code, probe_check, poll_code
from asmlib import fix_hazards

def SQ(qt, r=0): return 64 + qt*16 + r
def NEGM(qt): return 32 + qt*4
def OT(qt, dt): return 128 + (qt*8 + dt)*4
def QF(qt, ks): return (qt*4 + ks)*4
def KF(s, kt, ks): return 64 + (s*8 + kt*4 + ks)*4
def VF(s, dt): return 128 + (dt*2 + s)*4
ONES = 192; SIDX = 11

def smf(qt): return f"v_smfmac_f32_16x16x64_bf16 {vr(48 + 4*(qt//2))}, {ar(ONES + 4*(qt%2))}, {vr(SQ(qt), 8)}, v{SIDX}"
SNAKE = [1]
def chains():
    if SNAKE[0]: return [(0,0,0,0), (0,1,0,1), (0,1,1,0), (0,0,1,1), (1,0,1,0), (1,1,1,1), (1,1,0,0), (1,0,0,1)]
    return [(s, kt, qh, 0) for s in range(2) for kt in range(2) for qh in range(2)]
def qk_chain(H, c, first=False):
    s, kt, qh, desc = c
    qt = 2*H + qh; d = SQ(qt, s*8 + kt*4)
    return [m16(d, ar(KF(s, kt, 3-i if desc else i)), ar(QF(qt, 3-i if desc else i)), vr(d) if i else ("0" if first else vr(NEGM(qt)))) for i in range(4)]
def qk_list(H, first=False, sel=None):
    return [m for c in chains() if sel is None or (c[0] == 0 and c[1] == 0) == sel for m in qk_chain(H, c, first)]
def pv_list(H):
    if SNAKE[0]:
        o = []
        for h in range(2):
            for k in range(8):
                qh = (k // 4) ^ h; dt = h*4 + (k if k < 4 else 7 - k)
                o += [(dt, qh, k % 2), (dt, qh, 1 - k % 2)] if k < 4 else [(dt, qh, k % 2), (dt, qh, 1 - k % 2)]
    else: o = [(dt, qh, s) for dt in range(8) for qh in range(2) for s in range(2)]
    if gen3.SWAP[0]:
        return [m16(OT(2*H+qh, dt), vr(SQ(2*H+qh, 4*s)), ar(VF(s, dt)), vr(OT(2*H+qh, dt))) for dt, qh, s in o]
    return [m16(OT(2*H+qh, dt), ar(VF(s, dt)), vr(SQ(2*H+qh, 4*s)), vr(OT(2*H+qh, dt))) for dt, qh, s in o]
def stream(H):
    out = []
    tiles = [(0,0), (0,1), (1,0), (1,1), (1,2), (1,3), (0,2), (0,3)] if SNAKE[0] else [(t % 2, t // 2) for t in range(8)]
    for e in range(32):
        qh, t = tiles[e // 4]; qt = 2*H + qh; r = t*4 + e % 4
        out.append((f"v_exp_f32 v{SQ(qt, r)}, v{SQ(qt, r)}", f"v_cvt_pk_bf16_f32 v{SQ(qt, r//2)}, v{SQ(qt, r-1)}, v{SQ(qt, r)}" if r % 2 else None))
    return out
def kread(i): return f"ds_read_b128 {ar(64 + i*4)}, v3 offset:{(i//8)*16384 + (i%8)*1024}"
def vread(i): return f"ds_read_b128 {ar(VF(i%2, i//2))}, v2 offset:{(i%2)*16384 + 8192 + (i//2)*1024}"

def sum_init(L):
    a = L.append
    for i in range(48, 56): a(f"v_mov_b32 v{i}, 0")
    a("v_and_b32 v12, 2, v0")
    a("v_cmp_eq_u32 vcc, 0, v12")
    a("v_mov_b32 v12, 0x3f803f80")
    a("v_and_b32 v13, 1, v0")
    a("v_cndmask_b32 v14, 0, v12, vcc")
    a("v_cmp_eq_u32 vcc, 1, v13")
    a("v_sub_u32 v15, v12, v14")
    for i in range(4): a(f"v_accvgpr_write_b32 a{ONES+i}, v14")
    for i in range(4): a(f"v_accvgpr_write_b32 a{ONES+4+i}, v15")
    a(f"v_mov_b32 v{SIDX}, 0x44444444")
    a("v_mov_b32 v13, 0xeeeeeeee")
    a(f"v_cndmask_b32 v{SIDX}, v{SIDX}, v13, vcc")

def body(opt):
    D = opt.get('delta', 56)
    mf = pv_list(0) + qk_list(0) + pv_list(1) + qk_list(1)
    gaps = [[m] for m in mf]
    for H in range(2):
        for e, (x, c) in enumerate(stream(H)):
            g = D + 64*H + 2*e
            gaps[g % 128].append(x)
            if c: gaps[(g + 3) % 128].append(c)
    for i in range(16):
        gaps[2*i + 1].insert(1, kread(i))
        gaps[96 + 2*i + 1].insert(1, vread(i))
    own = {}; pre = {}
    if opt.get('smadj', 1):
        p0, p1 = opt.get('smp', [9, 69])
        own[p0] = [smf(0)]; own[p1] = [smf(2)]
        pre = {p0: smf(1), p1: smf(3)}
    else:
        for p, qt in zip(opt.get('smpos', [9, 21, 69, 85]), range(4)): own[p] = [smf(qt)]
    def room(g, extra=False):
        lst = own[g] if extra else gaps[g]
        return 8 - sum(cost(x) for x in lst[1:])
    def place(lo, hi, ins):
        for g in range(lo, hi + 1):
            if room(g) >= cost(ins):
                k = 2 if len(gaps[g]) > 1 and gaps[g][1].startswith('ds_read') else 1
                gaps[g].insert(k, ins); return g
            if g in own and room(g, True) >= cost(ins):
                own[g].append(ins); return g
        raise Exception(f"no room for {ins} in {lo}..{hi}")
    W = lambda n: f"s_waitcnt lgkmcnt({n})"
    def endw(g, n):
        gaps[g].append(W(n))
    endw(15, 8); endw(31, 8); endw(47, 0); endw(127, 8)
    dma = lambda k: f"buffer_load_dwordx4 v1, s[12:15], s22 offen offset:{k*1024} sc1 lds"
    place(33, 40, "v_mov_b32 v2, v3")
    g = place(41, 44, "v_add_u32 v3, 0x8000, v3")
    place(g+1, 50, "v_and_b32 v3, 0x1ffff, v3")
    place(33, 46, "v_add_u32 v7, 1, v7")
    g = place(33, 40, "s_add_u32 s22, s22, 0x4000")
    place(g+1, 46, "s_and_b32 m0, s22, 0x1ffff")
    g = place(48, 49, "s_waitcnt vmcnt(0)")
    g = place(g+1, 51, "ds_write_b32 v6, v7")
    HP = 51
    bc = "s_bitcmp1_b32 s35, s24" if opt.get('wmask', 1) else f"s_bitcmp1_b32 {opt['hmask']:#x}, s24"
    g = place(36, 46, bc)
    for x in range(g, HP + 1):
        assert not any(y.startswith('s_add') or y.startswith('s_and') for y in gaps[x][ (gaps[x].index(bc) + 1) if x == g else 0:]), "scc clobber"
    dp = opt.get('dmapos', [55, 59, 65, 69, 75, 81, 85, 91])
    place(52, 53, "s_add_u32 s24, s24, 1")
    gd = []
    for k in range(4): gd.append(place(dp[k], dp[k] + 3, dma(k)))
    g = place(gd[3] + 1, gd[3] + 4, "s_add_u32 s22, s22, 0x4000")
    g = place(g + 1, g + 3, "s_and_b32 m0, s22, 0x1ffff")
    assert g < dp[4]
    for k in range(4): gd.append(place(dp[4+k], dp[4+k] + 3, dma(k)))
    g = place(76, 82, "ds_read_b32 v9, v8")
    g = place(86, 90, W(0))
    g = place(g+1, 93, "v_cmp_gt_u32 vcc, v7, v9")
    g = place(g+1, 95, "s_cbranch_vccnz L_spin")
    lst = gaps[g] if "s_cbranch_vccnz L_spin" in gaps[g] else own[g]
    lst.insert(lst.index("s_cbranch_vccnz L_spin") + 1, "L_spin_ret:")
    if opt.get('tail3', 0):
        g = place(gd[0] + 1, 62, "s_cmp_eq_u32 s24, 31")
        gaps[63].append("s_cbranch_scc1 L_tail")
    else: place(98, 126, "s_cmp_eq_u32 s24, 31")
    out = []
    drop = []
    if opt.get('nodma', 0): drop.append('buffer_load')
    if opt.get('novm', 0): drop.append('s_waitcnt vmcnt')
    if opt.get('nolgkm', 0): drop.append('s_waitcnt lgkm')
    if opt.get('nods', 0): drop.append('ds_read_b128')
    if opt.get('nofs', 0): drop += ['ds_read_b32', 'ds_write_b32', 's_cbranch_vccnz', 'v_cmp']
    if opt.get('nohook', 0): opt['_'] = 1
    for g in range(128):
        out.append([x for x in gaps[g] + ([pre[g]] if g in pre else []) + own.get(g, []) if not any(x.startswith(d) for d in drop)])
    return out, HP, D

def units(L, exact):
    pr = []; unit_proc(pr, exact)
    ld = []; unit_load(ld, "")
    cv = pr[1:17]
    kb = pr[pr.index("s_cbranch_scc1 L_uproc_v") + 1:pr.index("s_cmp_lg_u32 s42, 0")]
    i0 = pr.index("L_uproc_v:")
    vb = pr[i0 + 1:pr.index("s_cbranch_scc1 L_uproc_vm")]
    kl = ld[ld.index("s_cbranch_scc1 L_uload_v") + 1:ld.index("s_branch L_uload_e")]
    vl = ld[ld.index("L_uload_v:") + 1:ld.index("L_uload_e:")]
    a = L.append
    def tail(tag, loads):
        a(f"L_ust_{tag}:")
        a("s_add_u32 s39, s39, 0x40000"); a("s_add_u32 s40, s40, 0x40000")
        a("s_bitcmp1_b32 6, s24")
        a(f"s_cbranch_scc0 L_uret_{tag}")
        a(f"L_uload_{tag}:")
        L.extend(loads)
        a("s_add_u32 s36, s36, 0x40000"); a("s_add_u32 s37, s37, 0x40000"); a("s_add_u32 s38, s38, 1024")
        a("s_cmp_eq_u32 s24, 2")
        a("s_cbranch_scc1 L_flag_n")
        a(f"L_uret_{tag}:")
        a(f"s_setpc_b64 {LINK}")
    a("L_uload:")
    a("s_cmp_lg_u32 s41, 0")
    a("s_cbranch_scc1 L_uload_v")
    a("s_branch L_uload_k")
    a("L_uproc:")
    a("s_cmp_lg_u32 s41, 0")
    a("s_cbranch_scc1 L_uproc_v")
    a("L_uproc_k:")
    L += cv + kb
    a("s_cmp_lg_u32 s42, 0")
    a("s_cbranch_scc1 L_uproc_km")
    a("buffer_store_dwordx4 v[16:19], v5, s[12:15], s39 offen")
    a("buffer_store_dwordx4 v[24:27], v5, s[12:15], s40 offen")
    tail("k", kl)
    a("L_uproc_v:")
    L += cv + vb
    a("s_cbranch_scc1 L_uproc_vm")
    a("buffer_store_dwordx4 v[56:59], v5, s[12:15], s39 offen")
    a("buffer_store_dwordx4 v[60:63], v5, s[12:15], s39 offen offset:16")
    tail("v", vl)

def units_mixed(L):
    L += ["L_uproc_km:", "buffer_store_dwordx4 v[16:19], v5, s[12:15], s39 offen sc1", "buffer_store_dwordx4 v[24:27], v5, s[12:15], s40 offen sc1", "s_branch L_ust_k",
          "L_uproc_vm:", "buffer_store_dwordx4 v[56:59], v5, s[12:15], s39 offen sc1", "buffer_store_dwordx4 v[60:63], v5, s[12:15], s39 offen offset:16 sc1", "s_branch L_ust_v"]

def build(opt):
    pre1 = opt.get('pre1', 0)
    gen3.SWAP[0] = swap = opt.get('swap', 1)
    SNAKE[0] = opt.get('snake', 1)
    gen3.FMA[0] = opt.get('fma', 0); gen3.NOEX[0] = opt.get('noex', 0)
    gen3.SCHED[0] = pre1
    wb = opt.get('wb', 27)
    opt['hmask'] = 0 if opt.get('nohook', 0) else (0xc3f | (1 << wb))
    exact = opt.get('exact', 0); LD = ""
    st, st_store = mkstamp(opt)
    P = []; a = P.append
    a("s_cmp_ge_u32 s2, 256")
    a("s_cbranch_scc1 L_end")
    st(P, 0)
    a("s_load_dwordx16 s[80:95], s[0:1], 0")
    a("s_load_dwordx4 s[96:99], s[0:1], 64")
    if not opt.get('rtlate', 0): a("s_memrealtime s[62:63]")
    a("v_lshrrev_b32 v5, 6, v0")
    a("v_and_b32 v0, 63, v0")
    a("v_readfirstlane_b32 s20, v5")
    a("v_lshlrev_b32 v1, 4, v0")
    a("s_and_b32 s28, s2, 7")
    a("s_lshr_b32 s29, s2, 3")
    a("s_lshl_b32 s30, s28, 20")
    a("s_lshr_b32 s41, s20, 1")
    a(f"s_mov_b32 s70, {f2u(CSCALE):#x}"); a("s_mov_b32 s71, s70")
    a("s_getreg_b32 s21, hwreg(HW_REG_XCC_ID, 0, 4)")
    a("s_mov_b32 s43, 0"); a("s_mov_b32 s24, 0"); a("s_mov_b32 s42, 0")
    a("s_lshl_b32 s31, s28, 5"); a("s_add_u32 s31, s31, s29"); a("s_lshl_b32 s31, s31, 16")
    a("s_lshl_b32 s3, s20, 14"); a("s_add_u32 s31, s31, s3")
    a("s_add_u32 s32, s31, 4096"); a("s_add_u32 s33, s31, 8192"); a("s_add_u32 s34, s31, 12288")
    a("v_and_b32 v6, 15, v0"); a("v_lshrrev_b32 v7, 4, v0")
    a("v_lshlrev_b32 v4, 8, v6"); a("v_lshl_add_u32 v4, v7, 4, v4")
    a("s_waitcnt lgkmcnt(0)")
    st(P, 6)
    if opt.get('rtlate', 0): a("s_memrealtime s[62:63]")
    def qloads(qts):
        for qt in qts:
            for ks in range(4): a(f"buffer_load_dwordx4 {ar(QF(qt,ks))}, v4, s[16:19], s{31+qt} offen offset:{ks*64}")
    a("s_add_u32 s12, s98, s30"); a("s_addc_u32 s13, s99, 0"); a("s_mov_b32 s14, 0x100000"); a("s_mov_b32 s15, 0x20000")
    srd(P, 16, 80, 81, 16 << 20)
    a("s_mov_b32 s26, s98"); a("s_mov_b32 s27, s99")
    a("s_add_u32 s4, s98, 0x800000"); a("s_addc_u32 s5, s99, 0"); a("s_mov_b32 s6, 0xc000"); a("s_mov_b32 s7, 0x20000")
    a("s_bitcmp1_b32 s20, 0")
    a("s_cbranch_scc1 L_oddw")
    a("s_call_b64 s[66:67], L_early")
    a("s_barrier")
    a("s_branch L_odd")
    U2 = opt.get('u2', 0)
    if U2: early_code(P, LD, 1, part=0); unit_setup(P); early_code(P, LD, 1, part=1); units(P, exact); flag_code(P)
    else: early_code(P, LD, 1, part=0); unit_setup(P); unit_load(P, LD); early_code(P, LD, 1, part=1); unit_proc(P, exact); flag_code(P)
    a("L_oddw:")
    a("s_lshr_b32 s22, s29, 2"); a("s_add_u32 s22, s22, 24"); a("s_and_b32 s23, s29, 3")
    a(call("L_usetup"))
    a("s_barrier")
    qloads((0, 1))
    a("s_barrier")
    a("s_branch L_odd2")
    a("L_odd:")
    qloads((0, 1))
    a("L_odd2:")
    a("s_lshl_b32 s3, s29, 2"); a("s_add_u32 s3, s3, s20"); a("s_xor_b32 s3, s3, 1")
    a(f"s_cmp_ge_u32 s3, {4*opt.get('cpf', 8)}"); a("s_cbranch_scc1 L_nopf")
    a("s_and_b32 s3, s3, 3"); a("s_cmp_lg_u32 s3, 0"); a("s_cbranch_scc1 L_nopf")
    a("s_getpc_b64 s[68:69]")
    a("s_lshl_b32 s3, s29, 10"); a("s_add_u32 s68, s68, s3"); a("s_addc_u32 s69, s69, 0")
    a("v_mov_b32 v41, s69"); a("v_add_co_u32 v40, vcc, s68, v1"); a("v_addc_co_u32 v41, vcc, 0, v41, vcc")
    a("global_load_dwordx4 v[44:47], v[40:41], off")
    a("L_nopf:")
    a(f"s_mov_b32 s25, {opt.get('slowpolls', 2048)}")
    if opt.get('wmask', 1):
        a("s_cmp_eq_u32 s20, 3"); a(f"s_cselect_b32 s35, {0x3f if pre1 else 0xc3f:#x}, 0x3f")
        a("s_xor_b32 s3, s20, 2"); a("s_or_b32 s3, s3, s29"); a("s_cmp_eq_u32 s3, 0"); a(f"s_cselect_b32 s35, {0x3f | (1 << wb):#x}, s35")
    a("s_lshl_b32 s100, s28, 10")
    a("s_lshl_b32 s101, s29, 2"); a("s_add_u32 s101, s101, s20"); a("s_lshl_b32 s101, s101, 3"); a("s_add_u32 s101, s101, s100")
    if opt.get('rtlate', 0): a("s_waitcnt lgkmcnt(0)")
    a("s_add_u32 s21, s21, 1"); a("s_lshl_b32 s21, s21, 28"); a("s_and_b32 s63, s63, 0x0fffffff"); a("s_or_b32 s63, s63, s21")
    a("s_sub_u32 s60, s62, 2000"); a("s_subb_u32 s61, s63, 0")
    a("s_waitcnt vmcnt(8)")
    st(P, 9)
    def grp(first):
        r = [] if first else ["s_add_u32 s22, s22, 0x4000"]
        return r + ["s_and_b32 m0, s22, 0x1ffff", "s_nop 0"] + [f"buffer_load_dwordx4 v1, s[12:15], s22 offen offset:{k*1024} sc1 lds" for k in range(4)]
    if opt.get('split', 0):
        a(call("L_flag"))
        a("s_bitcmp0_b32 s20, 0")
        a("s_cbranch_scc1 L_noqb")
        qloads((2, 3))
        a("L_noqb:")
        a("v_lshlrev_b32 v6, 2, v0"); a("v_add_u32 v6, 0x20100, v6")
        a("v_and_b32 v8, 3, v0"); a("v_lshl_add_u32 v8, v8, 8, v6")
        a("s_lshl_b32 s3, s20, 8"); a("v_add_u32 v6, s3, v6")
        a("v_mov_b32 v7, 0")
        a("ds_write_b32 v6, v7")
        a("v_mov_b32 v3, v1"); a("v_mov_b32 v2, v1")
        for i in range(128, 256): a(f"v_mov_b32 v{i}, 0")
        sum_init(P)
        a("buffer_load_dwordx4 v[56:59], v1, s[4:7], s100 offen sc1")
        a("s_waitcnt vmcnt(0)")
        probe_check(P)
        a("s_cbranch_scc0 L_go")
        a(call("L_poll"))
        a("s_cbranch_scc1 L_redo")
        a("L_go:")
        st(P, 1)
        a("s_mov_b32 s25, 0x100000")
        a("s_lshl_b32 s22, s20, 12")
        a("s_bitcmp1_b32 s20, 0")
        a("s_cbranch_scc1 L_go_o")
        for t in range(2):
            P += grp(True); a("s_add_u32 s22, s22, 0x1000"); P += grp(True); a(f"s_add_u32 s22, s22, {0x3000 if t == 0 else -0x1000 & 0xffffffff:#x}")
        qloads((2, 3))
        for t in range(2): P += grp(False)
        a("s_waitcnt vmcnt(16) lgkmcnt(0)")
        a("s_branch L_go_j")
        a("L_go_o:")
        a("s_add_u32 s22, s22, 0x4000")
        for t in range(2): P += grp(False)
        a("s_waitcnt lgkmcnt(0)")
        a("L_go_j:")
        srd(P, 16, 94, 95, 16 << 20)
        a("s_barrier")
        st(P, 10)
        B, HP, D = body(opt)
        for i in range(15): a(kread(i))
        nread = 15
        rest = []
        for t in range(2):
            x = grp(False); rest += [x[:4]] + [[y] for y in x[4:]]
        for H in range(2):
            if H == 1: a("s_waitcnt vmcnt(8)")
            for i, m in enumerate(qk_list(H, True)[:8]):
                if H == 0 and i < 4: a(f"s_waitcnt lgkmcnt({nread - 1 - i})")
                a(m)
                if H == 0 and i == 0: a(kread(15)); nread += 1
                if H == 0 and i >= 4: a(vread(nread - 16)); nread += 1
                if H == 1: P += rest.pop(0)
            for qh in range(2):
                s = SQ(2*H + qh)
                a(f"v_max3_f32 v{12+qh}, v{s}, v{s+1}, v{s+2}")
                a(f"v_max_f32 v{12+qh}, v{12+qh}, v{s+3}")
            smax_reduce(P, [12, 13], "v_max_f32", 14)
            for qh in range(2):
                for r in range(4): a(f"v_sub_f32 v{NEGM(2*H+qh)+r}, 0, v{12+qh}")
            v0 = [f"v_sub_f32 v{SQ(2*H+qh, r)}, v{SQ(2*H+qh, r)}, v{12+qh}" for qh in range(2) for r in range(4)]
            if H == 0:
                pend = None
                for x, c in stream(0):
                    v0.append(x)
                    if pend: v0.append(pend)
                    pend = c
                v0.append(pend)
                a("s_waitcnt lgkmcnt(4)")
            for i, m in enumerate(qk_list(H)[8:]):
                a(m)
                if nread < 32: a(vread(nread - 16)); nread += 1
                budget = 8
                while v0 and budget >= cost(v0[0]) and (H == 1 or len(v0) > 56 - 2*i - 4): budget -= cost(v0[0]); a(v0.pop(0))
            P += v0
        assert not rest
    else:
        a(call("L_flag"))
        a("buffer_load_dwordx4 v[56:59], v1, s[4:7], s100 offen sc1")
        qloads((2, 3))
        srd(P, 16, 94, 95, 16 << 20)
        a("v_lshlrev_b32 v6, 2, v0"); a("v_add_u32 v6, 0x20100, v6")
        a("v_and_b32 v8, 3, v0"); a("v_lshl_add_u32 v8, v8, 8, v6")
        a("s_lshl_b32 s3, s20, 8"); a("v_add_u32 v6, s3, v6")
        a("v_mov_b32 v7, 0")
        a("ds_write_b32 v6, v7")
        a("v_mov_b32 v3, v1"); a("v_mov_b32 v2, v1")
        for i in range(128, 256): a(f"v_mov_b32 v{i}, 0")
        sum_init(P)
        a("s_waitcnt vmcnt(8)")
        probe_check(P)
        a("s_cbranch_scc0 L_go")
        a(call("L_poll"))
        a("s_cbranch_scc1 L_redo")
        a("L_go:")
        st(P, 1)
        a("s_mov_b32 s25, 0x100000")
        a("s_lshl_b32 s22, s20, 12")
        def grp(first):
            r = [] if first else ["s_add_u32 s22, s22, 0x4000"]
            return r + ["s_and_b32 m0, s22, 0x1ffff", "s_nop 0"] + [f"buffer_load_dwordx4 v1, s[12:15], s22 offen offset:{k*1024} sc1 lds" for k in range(4)]
        for t in range(4): P += grp(t == 0)
        if pre1: a(call("L_uload"))
        a(f"s_waitcnt vmcnt({8 + 6*pre1}) lgkmcnt(0)")
        a("s_barrier")
        st(P, 10)
        for i in range(15): a(kread(i))
        rest = []
        for t in range(2):
            x = grp(False); rest += [x[:4]] + [[y] for y in x[4:]]
        B, HP, D = body(opt)
        f0 = qk_list(0, True, True) + qk_list(1, True, True)
        nread = 15
        for i, m in enumerate(f0):
            if i < 4: a(f"s_waitcnt lgkmcnt({nread - 1 - i})")
            a(m)
            if i == 0: a(kread(15)); nread += 1
            if i >= 4 and nread < 27: a(vread(nread - 16)); nread += 1
            if i % 2 == 1 and rest: P += rest.pop(0)
        assert not rest
        for qt in range(4):
            s = SQ(qt)
            a(f"v_max3_f32 v{12+qt}, v{s}, v{s+1}, v{s+2}")
            a(f"v_max_f32 v{12+qt}, v{12+qt}, v{s+3}")
        smax_reduce(P, [12, 13, 14, 15], "v_max_f32", 68 if pre1 else 16)
        for qt in range(2):
            for r in range(4): a(f"v_sub_f32 v{NEGM(qt)+r}, 0, v{12+qt}")
        v0 = [f"v_sub_f32 v{NEGM(qt)+r}, 0, v{12+qt}" for qt in (2, 3) for r in range(4)]
        v0 += [f"v_sub_f32 v{SQ(qt, r)}, v{SQ(qt, r)}, v{12+qt}" for qt in range(4) for r in range(4)]
        nsub = len(v0)
        pend = None
        for x, c in stream(0):
            v0.append(x)
            if pend: v0.append(pend)
            pend = c
        v0.append(pend)
        a("s_waitcnt lgkmcnt(11)")
        for i, m in enumerate(qk_list(0, False, False) + qk_list(1, False, False)):
            a(m)
            if nread < 32: a(vread(nread - 16)); nread += 1
            budget = 8
            while v0 and budget >= cost(v0[0]): budget -= cost(v0[0]); a(v0.pop(0))
        P += v0
    n1 = (128 - (D + 64)) // 2
    s1 = stream(1)
    for e in range(n1):
        a(s1[e][0])
        if e >= 1 and s1[e-1][1] and D + 64 + 2*(e-1) + 3 < 128: a(s1[e-1][1])
    if s1[n1-1][1] and D + 64 + 2*(n1-1) + 3 < 128: a(s1[n1-1][1])
    a("v_add_u32 v3, 0x8000, v3")
    a("s_waitcnt vmcnt(8) lgkmcnt(0)")
    a("s_barrier")
    if pre1: a(call("L_uproc"))
    st(P, 2)
    a(f"s_getpc_b64 {LINK}")
    a("L_pc:")
    a("s_add_u32 s64, s64, L_loop-L_pc"); a("s_addc_u32 s65, s65, 0")
    a("s_branch L_entry")
    P = fix_hazards(P)
    first = flat(B[:HP+1]); second = flat(B[HP+1:])
    fix_hazards(first + second, insert=False, ctx=P, name='loop-entry')
    fix_hazards(first + second, insert=False, ctx=first + second, name='loop-back')
    Lp = [".p2align 6", "L_loop:"] + second + ([] if opt.get('tail3', 0) else ["s_cbranch_scc1 L_tail"]) + ["L_entry:"] + first + ["s_cbranch_scc0 L_loop"]
    H = []; a = H.append
    a("s_sub_u32 s3, s24, 1")
    a(f"s_cmp_gt_u32 s3, {1 if pre1 else 2}")
    if U2:
        a("s_cbranch_scc1 L_hook_s")
        a("s_cmp_lg_u32 s41, 0")
        a("s_cbranch_scc1 L_uproc_v")
        a("s_branch L_uproc_k")
    else:
        a("s_cbranch_scc0 L_uproc")
        a("s_branch L_hook_s")
    a("L_hook_w:")
    a("s_cmp_eq_u32 s24, 0")
    a("s_cbranch_scc1 L_uload")
    if not opt.get('wmask', 1):
        a("s_or_b32 s3, s20, s29"); a("s_cmp_lg_u32 s3, 0")
        a("s_cbranch_scc1 L_loop")
    a("buffer_wbl2 sc1")
    a("s_branch L_loop")
    a("L_hook_s:")
    a("s_cmp_gt_u32 s3, 10")
    a("s_cbranch_scc1 L_hook_w")
    if pre1:
        a("s_cmp_eq_u32 s24, 3")
        a("s_cbranch_scc1 L_flag_n")
    a("s_bitcmp1_b32 s24, 0")
    a("s_cbranch_scc1 L_hook_c")
    a("s_add_u32 s100, s100, 0x4000")
    a("buffer_load_dwordx4 v[56:59], v1, s[4:7], s100 offen sc1")
    if not pre1:
        a("s_cmp_eq_u32 s24, 4")
        a("s_cbranch_scc1 L_flag_n")
    a("s_branch L_loop")
    a("L_hook_c:")
    probe_check(H)
    a("s_cbranch_scc0 L_loop")
    a("s_cmp_lg_u32 s43, 0")
    a("s_cbranch_scc1 L_loop")
    a("s_branch L_poll")
    H = fix_hazards(H, ctx=first)
    def linv(L, qts):
        for qt in qts:
            for r in range(4): L.append(f"ds_bpermute_b32 v{24+4*(qt%2)+r}, v{16+r}, v{20+qt}")
    def epi_q(L, qt):
        if swap:
            li = 24 + 4*(qt % 2)
            for r in (0, 2):
                for dt in range(8): L.append(f"v_pk_mul_f32 {vr(OT(qt,dt)+r,2)}, {vr(OT(qt,dt)+r,2)}, {vr(li+r,2)}")
                for rr in (r, r+1):
                    for j in range(4): L.append(f"v_cvt_pk_bf16_f32 v{SQ(qt, 4*rr+j)}, v{OT(qt,2*j)+rr}, v{OT(qt,2*j+1)+rr}")
                    L.append(f"buffer_store_dwordx4 {vr(SQ(qt, 4*rr))}, v4, s[16:19], s{31+qt} offen offset:{rr*256} sc0 sc1")
            return
        for s in range(4):
            o = OT(qt, 2*s)
            for r in range(0, 8, 2): L.append(pk("v_pk_mul_f32", o+r, o+r, 20+qt, bsel=1))
            for r in range(0, 8, 2): L.append(f"v_cvt_pk_bf16_f32 v{o+r//2}, v{o+r}, v{o+r+1}")
            L.append(f"buffer_store_dwordx4 {vr(o)}, v4, s[16:19], s{31+qt} offen offset:{s*64} sc0 sc1")
    if opt.get('tail3', 0):
        tr = opt.get('tr', 1)
        def epi_ops(qt):
            if not tr:
                L = []; epi_q(L, qt); return [L[9*k:9*k+9] for k in range(4)]
            w = []
            for s in range(4):
                o = OT(qt, 2*s)
                for r in range(0, 8, 2): w.append(pk("v_pk_mul_f32", o+r, o+r, 20+qt, bsel=1))
                for r in range(0, 8, 2): w.append(f"v_cvt_pk_bf16_f32 v{o+r//2}, v{o+r}, v{o+r+1}")
                w.append(f"ds_write_b128 v{24+s}, {vr(o)} offset:{qt*16384}")
            w.append("s_waitcnt lgkmcnt(0)")
            for k in range(4): w.append(f"ds_read_b128 {vr(OT(qt, 2*k))}, v{28+k} offset:{qt*16384}")
            st_ = lambda k: [f"s_waitcnt lgkmcnt({3-k})", f"buffer_store_dwordx4 {vr(OT(qt, 2*k))}, v1, s[16:19], s{31+qt} offen offset:{k*1024} sc0 sc1"]
            return [w + st_(0), st_(1), st_(2), st_(3)]
        T = ["L_tail:", "ds_read_b32 v9, v8"]; a = T.append
        if tr:
            a("v_and_b32 v16, 15, v0"); a("v_lshrrev_b32 v17, 4, v0"); a("s_lshl_b32 s3, s20, 12")
            a("v_lshlrev_b32 v18, 8, v16"); a("v_add_u32 v18, s3, v18"); a("v_xor_b32 v19, v16, v17")
            for s in range(4):
                a(f"v_xor_b32 v{24+s}, {4*s}, v19"); a(f"v_lshl_add_u32 v{24+s}, v{24+s}, 4, v18")
            a("v_lshlrev_b32 v18, 8, v17"); a("v_add_u32 v18, s3, v18")
            for k in range(4):
                a(f"v_xor_b32 v{28+k}, {4*k}, v19"); a(f"v_lshl_add_u32 v{28+k}, v{28+k}, 4, v18"); a(f"v_add_u32 v{28+k}, {k*1024}, v{28+k}")
        a("L_tail_w:")
        a("s_waitcnt lgkmcnt(0)")
        a("v_cmp_gt_u32 vcc, v7, v9")
        a("s_cbranch_vccz L_tail_g")
        a("ds_read_b32 v9, v8")
        a("s_branch L_tail_w")
        a("L_tail_g:")
        rem = [x for g in B[64:] for x in g if (x.startswith('v_exp') or x.startswith('v_cvt_pk')) and int(x.split()[1][1:-1]) < SQ(2)]
        for i, m in enumerate(pv_list(1)):
            a(m)
            if i == 1: T += [smf(2), smf(3)]
            budget = 8
            if i >= 4 and i % 2 == 0: a(vread((i - 4) // 2)); budget = 4 if cost(rem[0]) == 4 else 8
            while rem and budget >= cost(rem[0]): budget -= cost(rem[0]); a(rem.pop(0))
        T += [vread(14), vread(15)] + rem + [smf(0), smf(1)]
        for i, m in enumerate(pv_list(0)):
            if i % 8 == 0: a(f"s_waitcnt lgkmcnt({12 - 4*(i//8)})")
            a(m)
            if i == 6: a("v_add_f32 v12, v48, v49"); a("v_add_f32 v13, v50, v51")
            if i == 8: a("v_rcp_f32 v20, v12")
            if i == 9: a("v_rcp_f32 v21, v13")
        if tr: a("s_waitcnt vmcnt(0)")
        q1 = qk_list(1)
        T += q1[:8]
        st(T, 3)
        ch = epi_ops(0) + epi_ops(1)
        T += ch[0] + q1[8:20] + ch[1] + q1[20:] + ch[2]
        s1 = []; pend = None
        for x, c in stream(1):
            s1.append(x)
            if pend: s1.append(pend)
            pend = c
        s1.append(pend)
        T += s1[:24] + ch[3] + s1[24:] + [smf(2), smf(3)]
        x = pv_list(1)
        T += x[:12] + ch[4] + x[12:24]
        a("v_add_f32 v14, v52, v53"); a("v_add_f32 v15, v54, v55")
        a("v_rcp_f32 v22, v14"); a("v_rcp_f32 v23, v15")
        a(f"s_mov_b32 s30, {f2u(2.0**40):#x}")
        a("v_add_f32 v17, v12, v13"); a("v_add_f32 v18, v14, v15"); a("v_add_f32 v17, v17, v18")
        a("v_cmp_nlt_f32 vcc, v17, s30")
        T += ch[5] + x[24:] + ch[6]
        a("s_cbranch_vccnz L_slow")
        c2 = epi_ops(2); c3 = epi_ops(3)
        T += c2[0][:-2] + ch[7][1:] + c2[0][-2:] + c2[1] + c3[0][:-2] + c2[2][1:] + c2[3][1:] + c3[0][-2:] + c3[1] + c3[2] + c3[3] if tr else ch[7] + sum(c2 + c3, [])
    else:
        T = ["L_tail:", smf(0), smf(1)]; a = T.append
        rem = [x for g in B[:64] for x in g if (x.startswith('v_exp') or x.startswith('v_cvt_pk')) and int(x.split()[1][1:-1]) >= SQ(2)]
        oaddr = ["v_lshrrev_b32 v16, 4, v0", "v_and_b32 v4, 15, v0", "v_lshlrev_b32 v4, 4, v4", "v_lshl_add_u32 v4, v16, 10, v4",
                 "v_lshlrev_b32 v16, 4, v16", "v_add_u32 v17, 4, v16", "v_add_u32 v18, 8, v16", "v_add_u32 v19, 12, v16"]
        if swap: rem += oaddr
        if opt.get('tr0', 0):
            a("s_lshl_b32 s3, s20, 12")
            rem += ["v_and_b32 v16, 15, v0", "v_lshrrev_b32 v17, 4, v0", "v_lshlrev_b32 v18, 8, v16", "v_add_u32 v18, s3, v18", "v_xor_b32 v19, v16, v17"]
            for s in range(4): rem += [f"v_xor_b32 v{24+s}, {4*s}, v19", f"v_lshl_add_u32 v{24+s}, v{24+s}, 4, v18"]
            rem += ["v_lshlrev_b32 v18, 8, v17", "v_add_u32 v18, s3, v18"]
            for k in range(4): rem += [f"v_xor_b32 v{28+k}, {4*k}, v19", f"v_lshl_add_u32 v{28+k}, v{28+k}, 4, v18", f"v_add_u32 v{28+k}, {k*1024}, v{28+k}"]
        for i, m in enumerate(pv_list(0)):
            if i == 16: a("s_waitcnt lgkmcnt(0)")
            a(m)
            budget = 8
            while rem and budget >= cost(rem[0]): budget -= cost(rem[0]); a(rem.pop(0))
        T += rem
        a("v_add_f32 v12, v48, v49"); a("v_add_f32 v13, v50, v51")
        a("v_rcp_f32 v20, v12"); a("v_rcp_f32 v21, v13")
        T += [smf(2), smf(3)]
        if swap: linv(T, (0, 1))
        x = pv_list(1)
        if opt.get('tr0', 0):
            def prep(qt):
                w = []
                for s in range(4):
                    o = OT(qt, 2*s)
                    for r in range(0, 8, 2): w.append(pk("v_pk_mul_f32", o+r, o+r, 20+qt, bsel=1))
                    for r in range(0, 8, 2): w.append(f"v_cvt_pk_bf16_f32 v{o+r//2}, v{o+r}, v{o+r+1}")
                    w.append(f"ds_write_b128 v{24+s}, {vr(o)} offset:{qt*16384}")
                return w
            rd = lambda qt: ["s_waitcnt lgkmcnt(0)"] + [f"ds_read_b128 {vr(OT(qt, 2*k))}, v{28+k} offset:{qt*16384}" for k in range(4)]
            stq = lambda qt: [f"buffer_store_dwordx4 {vr(OT(qt, 2*k))}, v1, s[16:19], s{31+qt} offen offset:{k*1024} sc0 sc1" for k in range(4)]
            T += x[:6]
            a("s_waitcnt vmcnt(0)")
            st(T, 3)
            T += prep(0) + rd(0) + x[6:12] + ["s_waitcnt lgkmcnt(0)"] + stq(0)[:2] + prep(1) + rd(1) + stq(0)[2:] + x[12:24]
            a("v_add_f32 v14, v52, v53"); a("v_add_f32 v15, v54, v55")
            a("v_rcp_f32 v22, v14"); a("v_rcp_f32 v23, v15")
            a(f"s_mov_b32 s30, {f2u(2.0**40):#x}")
            a("v_add_f32 v17, v12, v13"); a("v_add_f32 v18, v14, v15"); a("v_add_f32 v17, v17, v18")
            a("v_cmp_nlt_f32 vcc, v17, s30")
            T += ["s_waitcnt lgkmcnt(0)"] + stq(1)[:1] + x[24:] + stq(1)[1:3]
            a("s_cbranch_vccnz L_slow")
            T += prep(2) + rd(2) + stq(1)[3:] + prep(3) + ["s_waitcnt lgkmcnt(4)"] + stq(2)[:2] + rd(3) + stq(2)[2:] + ["s_waitcnt lgkmcnt(0)"] + stq(3)
        else:
            T += x[:8]
            st(T, 3)
            if swap: a("s_waitcnt lgkmcnt(0)")
            epi_q(T, 0)
            T += x[8:20]
            a("v_add_f32 v14, v52, v53"); a("v_add_f32 v15, v54, v55")
            a("v_rcp_f32 v22, v14"); a("v_rcp_f32 v23, v15")
            a(f"s_mov_b32 s30, {f2u(2.0**40):#x}")
            a("v_add_f32 v12, v12, v13"); a("v_add_f32 v14, v14, v15"); a("v_add_f32 v12, v12, v14")
            a("v_cmp_nlt_f32 vcc, v12, s30")
            if swap: linv(T, (2,))
            T += x[20:]
            epi_q(T, 1)
            a("s_cbranch_vccnz L_slow")
            if swap: linv(T, (3,)); a("s_waitcnt lgkmcnt(4)")
            epi_q(T, 2)
            if swap: a("s_waitcnt lgkmcnt(0)")
            epi_q(T, 3)
    if opt.get('stamp', 0):
        a("s_waitcnt vmcnt(0)")
        st(T, 5)
        st_store(T)
    a("L_end:")
    a("s_endpgm")
    T = fix_hazards(T, ctx=(flat(B[:64]) if opt.get('tail3', 0) else second))
    X = ["L_spin:", "ds_read_b32 v9, v8", "s_waitcnt lgkmcnt(0)", "v_cmp_gt_u32 vcc, v7, v9", "s_cbranch_vccnz L_spin", "s_branch L_spin_ret"]
    if U2: units_mixed(X)
    poll_code(X, dict(opt, asym=1))
    a = X.append
    a("L_redo:")
    a("s_mov_b32 s43, 1")
    a("s_mov_b32 s21, 0")
    a("L_redo_l:")
    a("s_and_b32 s23, s21, 3"); a("s_lshr_b32 s22, s21, 2"); a("s_and_b32 s22, s22, 63"); a("s_lshr_b32 s41, s21, 8")
    a(call("L_usetup")); a(call("L_uload")); a("s_waitcnt vmcnt(0)"); a(call("L_uproc"))
    a("s_add_u32 s21, s21, 1")
    a("s_cmp_lt_u32 s21, 512")
    a("s_cbranch_scc1 L_redo_l")
    a("s_lshr_b32 s41, s20, 1"); a("s_and_b32 s22, s20, 1"); a("s_lshl_b32 s22, s22, 3"); a("s_lshr_b32 s3, s29, 2"); a("s_add_u32 s22, s22, s3")
    a("s_add_u32 s22, s22, 16"); a("s_and_b32 s23, s29, 3")
    a(call("L_usetup"))
    a("s_waitcnt vmcnt(0)")
    a("s_branch L_go")
    a("L_slow:")
    a("s_waitcnt vmcnt(0) lgkmcnt(0)")
    for qt in range(4): a(f"v_mov_b32 v{16+qt}, 0xff800000")
    def loads(kinds):
        for s in range(2):
            a(f"s_add_u32 s37, s36, {s*16384}"); a("s_add_u32 s38, s37, 4096"); a("s_add_u32 s39, s37, 8192"); a("s_add_u32 s40, s37, 12288")
            for f in range(8): a(f"buffer_load_dwordx4 {ar(64 + (s*8+f)*4)}, v1, s[12:15], s{37+f//4} offen offset:{(f%4)*1024} sc1")
            if kinds == 2:
                for f in range(8): a(f"buffer_load_dwordx4 {ar(VF(s, f))}, v1, s[12:15], s{39+f//4} offen offset:{(f%4)*1024} sc1")
        a("s_waitcnt vmcnt(0)")
    a("s_mov_b32 s36, 0")
    a("L_slow1:")
    loads(1)
    X += qk_list(0, True) + qk_list(1, True)
    a("s_nop 7")
    for qt in range(4):
        for r in range(0, 16, 2): a(f"v_max3_f32 v{16+qt}, v{16+qt}, v{SQ(qt,r)}, v{SQ(qt,r+1)}")
    a("s_add_u32 s36, s36, 0x8000")
    a("s_cmp_lt_u32 s36, 0x100000")
    a("s_cbranch_scc1 L_slow1")
    smax_reduce(X, [16, 17, 18, 19], "v_max_f32")
    for qt in range(4):
        for r in range(4): a(f"v_sub_f32 v{NEGM(qt)+r}, 0, v{16+qt}")
    for i in range(128, 256): a(f"v_mov_b32 v{i}, 0")
    for i in range(48, 56): a(f"v_mov_b32 v{i}, 0")
    a("s_mov_b32 s36, 0")
    a("L_slow2:")
    loads(2)
    X += qk_list(0) + qk_list(1)
    a("s_nop 7")
    for Hh in range(2):
        for x, c in stream(Hh): a(x)
        for x, c in stream(Hh):
            if c: a(c)
    X += pv_list(0) + pv_list(1) + [smf(q) for q in range(4)]
    a("s_nop 7")
    a("s_add_u32 s36, s36, 0x8000")
    a("s_cmp_lt_u32 s36, 0x100000")
    a("s_cbranch_scc1 L_slow2")
    for qt in range(4): a(f"v_add_f32 v{12+qt}, v{48+2*qt}, v{49+2*qt}")
    for qt in range(4): a(f"v_rcp_f32 v{20+qt}, v{12+qt}")
    if swap: X += oaddr
    for qt in range(4):
        if swap: linv(X, (qt,)); a("s_waitcnt lgkmcnt(0)")
        epi_q(X, qt)
    a("s_endpgm")
    X = fix_hazards(X)
    return P + Lp + H + T + X

DOC = """; ---------------------------------------------------------------------------------------------------------------
;   Hand-off flags at d_ws + 8 MiB carry the producer's entry clock and XCC id: a flag counts only inside this launch's time
; ---------------------------------------------------------------------------------------------------------------
"""

def generate(opt):
    full = build(opt)
    hdr = open(f"cdna_kernels/{NAME}.s.ref").read().split("; Override launch")[0]
    out = hdr
    out += DOC
    out += f"; @launch grid=(256,1,1) block=(256,1,1) lds={opt.get('lds', 163840)}\n"
    out += '.amdgcn_target "amdgcn-amd-amdhsa--gfx950"\n.text\n'
    out += f".globl {KMAIN}\n.p2align 8\n.type {KMAIN},@function\n{KMAIN}:\n" + fmt(full)
    out += '.section .rodata,"a"\n' + kd(KMAIN, 456, 256, 102)
    return out

if __name__ == "__main__":
    opt = {}
    path = f"cdna_kernels/{NAME}.s"
    for x in sys.argv[1:]:
        if x.startswith("-o"): path = x[2:]
        else:
            k, v = x.split("="); opt[k] = [int(y) for y in v.split(",")] if "," in v else int(v)
    open(path, "w").write(generate(opt))
    print("wrote", path)
```

```python
import sys
from mb_gen import prologue, build
from mb2_gen import series_stamp, epi2
import gen3, gen5
from gen import flat
def mk(name, opt, post=None):
    gen3.SWAP[0] = opt.get('swap', 1); gen5.SNAKE[0] = opt.get('snake', 1)
    opt = dict(opt, hmask=0)
    B, HP, D = gen5.body(opt)
    body = flat(B)
    if post: body = post(body)
    L = prologue(4); a = L.append
    a("s_mov_b32 s40, s12"); a("s_mov_b32 s41, s13"); a("s_mov_b32 s42, s14"); a("s_mov_b32 s43, s15")
    a("s_and_b32 s19, s2, 7"); a("s_lshl_b32 s19, s19, 20")
    a("s_add_u32 s12, s8, s19"); a("s_addc_u32 s13, s9, 0"); a("s_mov_b32 s14, 0x200000"); a("s_mov_b32 s15, 0x20000")
    a("v_mov_b32 v0, v2"); a("v_mov_b32 v1, v6"); a("v_mov_b32 v10, v2")
    a("s_lshl_b32 s22, s16, 12")
    for t in range(6):
        if t: a("s_add_u32 s22, s22, 0x4000")
        a("s_and_b32 m0, s22, 0x1ffff"); a("s_nop 0")
        for k in range(4): a(f"buffer_load_dwordx4 v1, s[12:15], s22 offen offset:{k*1024} lds")
    a("s_lshl_b32 s34, s16, 14"); a("s_add_u32 s34, s34, 0x2000000")
    for i in range(16):
        a(f"buffer_load_dwordx4 a[{i*4}:{i*4+3}], v1, s[8:11], s34 offen offset:{(i%4)*1024}")
        if i % 4 == 3: a("s_add_u32 s34, s34, 0x1000")
    for i in range(64, 192): a(f"v_accvgpr_write_b32 a{i}, 0")
    for i in range(32, 48): a(f"v_mov_b32 v{i}, -1.0")
    for i in range(64, 256): a(f"v_mov_b32 v{i}, 0")
    gen5.sum_init(L)
    a("v_lshlrev_b32 v6, 2, v0"); a("v_add_u32 v6, 0x20100, v6")
    a("v_and_b32 v8, 3, v0"); a("v_lshl_add_u32 v8, v8, 8, v6")
    a("s_lshl_b32 s3, s16, 8"); a("v_add_u32 v6, s3, v6")
    a("v_mov_b32 v7, 0"); a("ds_write_b32 v6, v7")
    a("v_mov_b32 v2, v1"); a("v_add_u32 v3, 0x8000, v1")
    a("s_mov_b32 s24, 0"); a("s_mov_b32 s35, 0")
    a("s_waitcnt vmcnt(0) lgkmcnt(0)"); a("s_barrier")
    a("s_memrealtime s[50:51]")
    a(".p2align 6"); a("L_loop:")
    L += body
    a("s_cbranch_scc0 L_loop")
    a("s_memrealtime s[52:53]")
    a("s_waitcnt lgkmcnt(0) vmcnt(0)")
    a("v_mov_b32 v8, 0"); a("v_mov_b32 v9, s50"); a("v_mov_b32 v11, s52")
    a("v_cmp_eq_u32 vcc, 1, v10"); a("s_nop 1"); a("v_cndmask_b32 v9, v9, v11, vcc")
    a("v_mov_b32 v2, v10")
    a("s_mov_b32 s12, s40"); a("s_mov_b32 s13, s41"); a("s_mov_b32 s14, s42"); a("s_mov_b32 s15, s43")
    L += epi2(4)
    L += ["L_spin:", "ds_read_b32 v9, v8", "s_waitcnt lgkmcnt(0)", "v_cmp_gt_u32 vcc, v7, v9", "s_cbranch_vccnz L_spin", "s_branch L_spin_ret"]
    build(name, L, 456, 256)
if __name__ == "__main__":
    V = {"z_base": {}, "z_nosnake": dict(snake=0), "z_d52": dict(delta=52), "z_d48": dict(delta=48), "z_smp": dict(smp=[31,95], dmapos=[55,59,63,67,75,79,83,87]), "z_sm2": dict(smadj=0), "z_nodma": dict(nodma=1)}
    for k, o in V.items(): mk(k, o)
    print(" ".join(k+".co" for k in V)); print(", ".join(f'"work/{k}.co"' for k in V))
```

```python
import sys
from mb_gen import *

def series_stamp(idx_sgpr):
    return ["s_memtime s[20:21]", "s_memrealtime s[22:23]", "s_waitcnt lgkmcnt(0)",
            f"v_cmp_eq_u32 vcc, {idx_sgpr}, v2", "v_mov_b32 v10, s20", "v_mov_b32 v11, s22", "v_cndmask_b32 v8, v8, v10, vcc", "v_cndmask_b32 v9, v9, v11, vcc"]

def epi2(nw):
    L = []
    a = L.append
    a("s_waitcnt lgkmcnt(0) vmcnt(0)")
    a(f"s_mul_i32 s17, s2, {nw}")
    a("s_add_u32 s17, s17, s16")
    a("s_lshl_b32 s17, s17, 9")
    a("v_lshlrev_b32 v7, 2, v2")
    a("buffer_store_dword v8, v7, s[12:15], s17 offen")
    a("buffer_store_dword v9, v7, s[12:15], s17 offen offset:256")
    a("s_waitcnt vmcnt(0)")
    a("s_endpgm")
    return L

def gen2(name, body, opt, nw=4, nv=512, acc=256):
    L = prologue(nw)
    a = L.append
    a("v_add_u32 v5, 0x10000, v6")
    a(f"s_lshl_b32 s18, s16, {12 if nw==4 else 11}")
    a("s_and_b32 s19, s2, 7")
    a("s_lshl_b32 s19, s19, 20")
    a("s_add_u32 s8, s8, s19"); a("s_addc_u32 s9, s9, 0")
    a("s_mov_b32 s19, s18")
    for st in range(8):
        a(f"s_add_u32 m0, s18, {st*16384}")
        a("s_nop 0")
        for i in range(4 if nw==4 else 2):
            a(f"buffer_load_dwordx4 v6, s[8:11], s19 offen offset:{i*1024} lds")
        a("s_add_u32 s19, s19, 16384")
    L += opt['init']
    a("v_mov_b32 v8, 0"); a("v_mov_b32 v9, 0")
    a("s_waitcnt vmcnt(0)")
    a("s_barrier")
    a("s_mov_b32 s33, 0")
    L += series_stamp("s33")
    a(".p2align 6")
    a("L_loop:")
    L += body
    a("s_add_u32 s33, s33, 1")
    L += series_stamp("s33")
    a(f"s_cmp_lt_u32 s33, {opt.get('iters', 8)}")
    a("s_cbranch_scc1 L_loop")
    L += epi2(nw)
    build(name, L, nv, acc)

def init_std():
    L = []
    a = L.append
    a("s_add_u32 s34, s18, 0x2000000")
    for i in range(16):
        a(f"buffer_load_dwordx4 a[{i*4}:{i*4+3}], v6, s[8:11], s34 offen offset:{(i%4)*1024}")
        if i % 4 == 3: a("s_add_u32 s34, s34, 0x4000")
    a("s_mov_b32 s34, 0")
    for i in range(16):
        a(f"buffer_load_dwordx4 a[{64+i*4}:{64+i*4+3}], v6, s[8:11], s34 offen offset:{(i%4)*1024}")
        if i % 4 == 3: a("s_add_u32 s34, s34, 0x1000")
    for i in range(32, 64): a(f"v_mov_b32 v{i}, -1.0")
    for i in range(64, 128): a(f"v_mov_b32 v{i}, 0x3f003f20")
    for i in range(128, 256): a(f"v_mov_b32 v{i}, 0")
    a("v_mov_b32 v3, 0"); a("v_mov_b32 v4, 0")
    return L

def body_std(opt):
    L = []
    for j in range(8):
        for sl in step(j, opt): L += sl
    return L

def body_16(opt):
    L = []
    for j in range(8):
        for sl in range(32):
            ks = sl // 8; kt = (sl % 8) // 4; qt = sl % 4
            d = 64 + ((j+1) % 2)*32 + (kt*4+qt)*4
            c = f"v[{32+qt*4}:{32+qt*4+3}]" if ks == 0 else f"v[{d}:{d+3}]"
            f = 64 + (kt*4+ks)*4
            q = (qt*4+ks)*4
            L.append(f"v_mfma_f32_16x16x32_bf16 v[{d}:{d+3}], a[{f}:{f+3}], a[{q}:{q+3}], {c}")
        for sl in range(32):
            dt = sl // 4; qt = sl % 4
            d = 128 + (qt*8+dt)*4
            f = 96 + dt*4
            p = 64 + (j % 2)*32 + qt*8
            L.append(f"v_mfma_f32_16x16x32_bf16 v[{d}:{d+3}], a[{f}:{f+3}], v[{p}:{p+3}], v[{d}:{d+3}]")
    return L

if __name__ == "__main__":
    o = dict(exp=0, add=0, cvt=0, ds=0, dma=0, bar=0)
    gen2("m2_bare32", body_std(o), dict(init=init_std()))
    gen2("m2_bare16", body_16(o), dict(init=init_std()))
    gen2("m2_full", body_std({}), dict(init=init_std()))
```

```python
import sys, subprocess, os

HDR = """.amdgcn_target "amdgcn-amd-amdhsa--gfx950"
.text
.globl bench_kernel
.p2align 8
.type bench_kernel,@function
bench_kernel:
"""
def tail(nv=512, acc=256):
    return f"""
.section .rodata,"a"
.p2align 6
.amdhsa_kernel bench_kernel
  .amdhsa_next_free_vgpr {nv}
  .amdhsa_next_free_sgpr 96
  .amdhsa_accum_offset {acc}
  .amdhsa_group_segment_fixed_size 0
  .amdhsa_kernarg_size 16
  .amdhsa_user_sgpr_count 2
  .amdhsa_user_sgpr_kernarg_segment_ptr 1
  .amdhsa_system_sgpr_workgroup_id_x 1
.end_amdhsa_kernel
.amdgpu_metadata
---
amdhsa.version: [1, 2]
amdhsa.kernels:
  - .name: bench_kernel
    .symbol: bench_kernel.kd
    .kernarg_segment_size: 16
    .kernarg_segment_align: 8
    .group_segment_fixed_size: 0
    .private_segment_fixed_size: 0
    .wavefront_size: 64
    .sgpr_count: 96
    .vgpr_count: {nv}
    .max_flat_workgroup_size: 512
    .args:
      - {{.name: kernargs, .size: 16, .offset: 0, .value_kind: by_value}}
...
.end_amdgpu_metadata
"""

def prologue(nwaves):
    L = []
    a = L.append
    a("s_load_dwordx4 s[4:7], s[0:1], 0")
    a("v_lshrrev_b32 v1, 6, v0")
    a("v_and_b32 v2, 63, v0")
    a("s_nop 0")
    a("v_readfirstlane_b32 s16, v1")
    a("s_waitcnt lgkmcnt(0)")
    a("s_mov_b32 s8, s4"); a("s_mov_b32 s9, s5"); a("s_mov_b32 s10, 0x4000000"); a("s_mov_b32 s11, 0x20000")
    a("s_mov_b32 s12, s6"); a("s_mov_b32 s13, s7"); a("s_mov_b32 s14, 0x400000"); a("s_mov_b32 s15, 0x20000")
    a("v_lshlrev_b32 v6, 4, v2")
    return L

def stamp(n):
    return [f"s_memtime s[{20+2*n}:{21+2*n}]"]

def epilogue(nwaves):
    L = []
    a = L.append
    a("s_memrealtime s[30:31]")
    a("s_waitcnt lgkmcnt(0) vmcnt(0)")
    a(f"s_mul_i32 s17, s2, {nwaves}")
    a("s_add_u32 s17, s17, s16")
    a("s_lshl_b32 s17, s17, 6")
    for i in range(12):
        a(f"v_mov_b32 v{8+i}, s{20+i}")
    a("v_mov_b32 v7, 0")
    a("v_cmp_eq_u32 vcc, 0, v2")
    a("s_and_saveexec_b64 s[40:41], vcc")
    a("buffer_store_dwordx4 v[8:11], v7, s[12:15], s17 offen")
    a("buffer_store_dwordx4 v[12:15], v7, s[12:15], s17 offen offset:16")
    a("buffer_store_dwordx4 v[16:19], v7, s[12:15], s17 offen offset:32")
    a("s_waitcnt vmcnt(0)")
    a("s_endpgm")
    return L

def build(name, body_lines, nv=512, acc=256):
    txt = HDR + "\n".join("  " + x if not x.endswith(":") else x for x in body_lines) + tail(nv, acc)
    open(name + ".s", "w").write(txt)
    r = subprocess.run(["clang", "-x", "assembler", "-target", "amdgcn-amd-amdhsa", "-mcpu=gfx950", name + ".s", "-o", name + ".co"], capture_output=True, text=True)
    if r.returncode != 0:
        print(r.stderr[:3000]); sys.exit(1)

def S(buf, qt, r=0): return 64 + buf*32 + qt*16 + r
def NEGM(qt): return 32 + qt*16
def O(qt, dt): return 128 + qt*64 + dt*16
def Q(qt, ks): return qt*32 + ks*4
def FR(f): return 64 + (f % 16)*4

def step(j, opt):
    slots = [[] for _ in range(32)]
    nb = (j+1) % 2; cb = j % 2
    for sl in range(16):
        ks, qt = sl//2, sl % 2
        c = f"v[{NEGM(qt)}:{NEGM(qt)+15}]" if ks == 0 else f"v[{S(nb,qt)}:{S(nb,qt)+15}]"
        slots[sl].append(f"v_mfma_f32_32x32x16_bf16 v[{S(nb,qt)}:{S(nb,qt)+15}], a[{FR(ks)}:{FR(ks)+3}], a[{Q(qt,ks)}:{Q(qt,ks)+3}], {c}")
    for sl in range(16, 32):
        idx = sl-16; s = idx//8; dt = (idx % 8)//2; qt = idx % 2
        f = 8 + s*4 + dt
        p = S(cb, qt, 8*s)
        slots[sl].append(f"v_mfma_f32_32x32x16_bf16 v[{O(qt,dt)}:{O(qt,dt)+15}], a[{FR(f)}:{FR(f)+3}], v[{p}:{p+3}], v[{O(qt,dt)}:{O(qt,dt)+15}]")
    D = opt.get('delta', 18)
    def elem(e, buf):
        grp = e//8; qt = grp % 2; s = grp//2
        return S(buf, qt, 8*s + e % 8), qt, s
    def at(t):
        e = t - D
        if e >= 0: return e, nb
        return e + 32, cb
    for t in range(32):
        fl = []
        if opt.get('exp', 1):
            e, b = at(t); r, qt, s = elem(e, b)
            fl.append(f"v_exp_f32 v{r}, v{r}")
        if opt.get('add', 1):
            e, b = at((t-1)) if t-1 >= 0 else (at(31)[0], cb)
            if t-1 < 0: e = (31 - D); b = cb
            r, qt, s = elem(e, b)
            fl.append(f"v_add_f32 v{3+qt}, v{3+qt}, v{r}")
        if opt.get('cvt', 1):
            tt = t-2
            if tt < 0: e = tt + 32 - D; b = cb
            else: e, b = at(tt)
            if e % 2 == 1:
                r, qt, s = elem(e, b)
                dst = S(b, qt, 8*s + (e % 8)//2)
                fl.append(f"v_cvt_pk_bf16_f32 v{dst}, v{r-1}, v{r}")
        slots[t] += fl
    if opt.get('ds', 1):
        for t in range(0, 32, 2):
            f = (t//2 + 8) % 16
            jj = j if t < 16 else j+1
            if f < 8: kstep = jj+1; off = (kstep % 8)*16384 + f*1024
            else: off = (jj % 8)*16384 + 8192 + (f-8)*1024
            areg = 6 if off < 65536 else 5
            off &= 65535
            slots[t+1].append(f"ds_read_b128 a[{FR(f)}:{FR(f)+3}], v{areg} offset:{off}")
        for t in range(0, 32, 8):
            slots[t].insert(0, "s_waitcnt lgkmcnt(4)")
    if opt.get('dma', 1):
        base = ((j+4) % 8)*16384
        pos = opt.get('dmapos', [2, 10, 18, 26])
        slots[pos[0]-1].append(f"s_add_u32 m0, s18, {base}")
        for i, p in enumerate(pos):
            slots[p].append(f"buffer_load_dwordx4 v6, s[8:11], s19 offen offset:{i*1024} lds")
        slots[pos[3]+1].append("s_add_u32 s19, s19, 16384")
        slots[pos[3]+2].append("s_and_b32 s19, s19, 0xfffff")
    if opt.get('bar', 1) and j % 2 == 0:
        slots[15].append("s_waitcnt vmcnt(8)")
        slots[15].append("s_barrier")
    return slots

def gen(name, opt):
    nw = 4
    L = prologue(nw)
    a = L.append
    a("v_add_u32 v5, 0x10000, v6")
    a("s_lshl_b32 s18, s16, 12")
    a("s_and_b32 s19, s2, 7")
    a("s_lshl_b32 s19, s19, 20")
    a("s_add_u32 s8, s8, s19"); a("s_addc_u32 s9, s9, 0")
    a("s_mov_b32 s19, s18")
    for st in range(8):
        a(f"s_add_u32 m0, s18, {st*16384}")
        a("s_nop 0")
        for i in range(4):
            a(f"buffer_load_dwordx4 v6, s[8:11], s19 offen offset:{i*1024} lds")
        a("s_add_u32 s19, s19, 16384")
    for i in range(16):
        a(f"buffer_load_dwordx4 a[{i*4}:{i*4+3}], v6, s[8:11], s18 offen offset:{(i%4)*1024}")
    for i in range(16):
        a(f"buffer_load_dwordx4 a[{64+i*4}:{64+i*4+3}], v6, s[8:11], s18 offen offset:{(i%4)*1024}")
    for i in range(32, 64): a(f"v_mov_b32 v{i}, -4.0")
    for i in range(64, 256): a(f"v_mov_b32 v{i}, 0")
    a("v_mov_b32 v3, 0"); a("v_mov_b32 v4, 0")
    a("s_waitcnt vmcnt(0)")
    a("s_barrier")
    a("s_memrealtime s[28:29]")
    L += stamp(0)
    a("s_mov_b32 s33, 0")
    a(".p2align 6")
    a("L_loop:")
    nsteps = opt.get('nsteps', 8)
    for j in range(nsteps):
        for sl in step(j, opt):
            L += sl
    a("s_cmp_lg_u32 s33, 0")
    a("s_cbranch_scc1 L_skip")
    L += stamp(1)
    a("L_skip:")
    a("s_add_u32 s33, s33, 1")
    a(f"s_cmp_lt_u32 s33, {opt.get('iters', 8)}")
    a("s_cbranch_scc1 L_loop")
    L += stamp(2)
    L += stamp(3)
    L += epilogue(nw)
    build(name, L)

if __name__ == "__main__":
    gen("mb_bare", dict(exp=0, add=0, cvt=0, ds=0, dma=0, bar=0))
    gen("mb_valu", dict(ds=0, dma=0, bar=0))
    gen("mb_valu_ds", dict(dma=0, bar=0))
    gen("mb_valu_ds_bar", dict(dma=0))
    gen("mb_full", dict())
    gen("mb_full_long", dict(iters=200))
```

```python
import re
from mb12_gen import mk
import gen5
orig = gen5.sum_init
def sum4(L):
    orig(L)
    L += ["v_and_b32 v12, 12, v0", "v_cmp_eq_u32 vcc, 0, v12", "s_nop 1", "v_cndmask_b32 v14, 0, v14, vcc", "v_cndmask_b32 v15, 0, v15, vcc"]
    for i in range(4): L += [f"v_accvgpr_write_b32 a{192+i}, v14", f"v_accvgpr_write_b32 a{196+i}, v15"]
gen5.sum_init = sum4
mk("x_sum4", {})
gen5.sum_init = orig
def cvt_late(b):
    out = []; pend = []
    for x in b:
        if x.startswith("v_cvt_pk"):
            if pend: out.append(pend.pop())
            pend.append(x)
        else: out.append(x)
    return out + pend
```

```python
import sys
import gen, gen3
from gen import vr, ar, m16, srd, f2u, CSCALE, NAME, KMAIN, fmt, kd, smax_reduce, cost, flat
from gen2 import pk
from gen3 import LINK, call, mkstamp, unit_setup, unit_load, unit_proc, early_code, flag_code, probe_check, poll_code
from asmlib import fix_hazards

def SQ(qt, r=0): return 64 + qt*16 + r
def NEGM(qt): return 32 + qt*4
def OT(qt, dt): return 128 + (qt*8 + dt)*4
def QF(qt, ks): return (qt*4 + ks)*4
def KF(s, kt, ks): return 64 + (s*8 + kt*4 + ks)*4
def VF(s, dt): return 128 + (dt*2 + s)*4
ONES = 192; SIDX = 11

def smf(qt): return f"v_smfmac_f32_16x16x64_bf16 {vr(48 + 4*(qt//2))}, {ar(ONES + 4*(qt%2))}, {vr(SQ(qt), 8)}, v{SIDX}"
SNAKE = [1]
def chains():
    if SNAKE[0]: return [(0,0,0,0), (0,1,0,1), (0,1,1,0), (0,0,1,1), (1,0,1,0), (1,1,1,1), (1,1,0,0), (1,0,0,1)]
    return [(s, kt, qh, 0) for s in range(2) for kt in range(2) for qh in range(2)]
def qk_chain(H, c, first=False):
    s, kt, qh, desc = c
    qt = 2*H + qh; d = SQ(qt, s*8 + kt*4)
    return [m16(d, ar(KF(s, kt, 3-i if desc else i)), ar(QF(qt, 3-i if desc else i)), vr(d) if i else ("0" if first else vr(NEGM(qt)))) for i in range(4)]
def qk_list(H, first=False, sel=None):
    return [m for c in chains() if sel is None or (c[0] == 0 and c[1] == 0) == sel for m in qk_chain(H, c, first)]
def pv_list(H):
    if SNAKE[0]:
        o = []
        for h in range(2):
            for k in range(8):
                qh = (k // 4) ^ h; dt = h*4 + (k if k < 4 else 7 - k)
                o += [(dt, qh, k % 2), (dt, qh, 1 - k % 2)] if k < 4 else [(dt, qh, k % 2), (dt, qh, 1 - k % 2)]
    else: o = [(dt, qh, s) for dt in range(8) for qh in range(2) for s in range(2)]
    if gen3.SWAP[0]:
        return [m16(OT(2*H+qh, dt), vr(SQ(2*H+qh, 4*s)), ar(VF(s, dt)), vr(OT(2*H+qh, dt))) for dt, qh, s in o]
    return [m16(OT(2*H+qh, dt), ar(VF(s, dt)), vr(SQ(2*H+qh, 4*s)), vr(OT(2*H+qh, dt))) for dt, qh, s in o]
def stream(H):
    out = []
    tiles = [(0,0), (0,1), (1,0), (1,1), (1,2), (1,3), (0,2), (0,3)] if SNAKE[0] else [(t % 2, t // 2) for t in range(8)]
    for e in range(32):
        qh, t = tiles[e // 4]; qt = 2*H + qh; r = t*4 + e % 4
        out.append((f"v_exp_f32 v{SQ(qt, r)}, v{SQ(qt, r)}", f"v_cvt_pk_bf16_f32 v{SQ(qt, r//2)}, v{SQ(qt, r-1)}, v{SQ(qt, r)}" if r % 2 else None))
    return out
def kread(i): return f"ds_read_b128 {ar(64 + i*4)}, v3 offset:{(i//8)*16384 + (i%8)*1024}"
def vread(i): return f"ds_read_b128 {ar(VF(i%2, i//2))}, v2 offset:{(i%2)*16384 + 8192 + (i//2)*1024}"

BIAS = [32]
def negm(qt, r, m): return f"v_sub_f32 v{NEGM(qt)+r}, s98, v{m}"
def sum_init(L):
    a = L.append
    for i in range(48, 56): a(f"v_mov_b32 v{i}, 0")
    a("v_and_b32 v12, 2, v0")
    a("v_cmp_eq_u32 vcc, 0, v12")
    a("v_mov_b32 v12, 0x3f803f80")
    a("v_and_b32 v13, 1, v0")
    a("v_cndmask_b32 v14, 0, v12, vcc")
    a("v_cmp_eq_u32 vcc, 1, v13")
    a("v_sub_u32 v15, v12, v14")
    for i in range(4): a(f"v_accvgpr_write_b32 a{ONES+i}, v14")
    for i in range(4): a(f"v_accvgpr_write_b32 a{ONES+4+i}, v15")
    a(f"v_mov_b32 v{SIDX}, 0x44444444")
    a("v_mov_b32 v13, 0xeeeeeeee")
    a(f"v_cndmask_b32 v{SIDX}, v{SIDX}, v13, vcc")

def body(opt):
    D = opt.get('delta', 56)
    mf = pv_list(0) + qk_list(0) + pv_list(1) + qk_list(1)
    gaps = [[m] for m in mf]
    for H in range(2):
        for e, (x, c) in enumerate(stream(H)):
            g = D + 64*H + 2*e
            gaps[g % 128].append(x)
            if c: gaps[(g + 3) % 128].append(c)
    for i in range(16):
        gaps[2*i + 1].insert(1, kread(i))
        gaps[96 + 2*i + 1].insert(1, vread(i))
    own = {}; pre = {}
    if opt.get('smadj', 1):
        p0, p1 = opt.get('smp', [9, 69])
        own[p0] = [smf(0)]; own[p1] = [smf(2)]
        pre = {p0: smf(1), p1: smf(3)}
    else:
        for p, qt in zip(opt.get('smpos', [9, 21, 69, 85]), range(4)): own[p] = [smf(qt)]
    def room(g, extra=False):
        lst = own[g] if extra else gaps[g]
        return 8 - sum(cost(x) for x in lst[1:])
    def place(lo, hi, ins):
        for g in range(lo, hi + 1):
            if room(g) >= cost(ins):
                k = 2 if len(gaps[g]) > 1 and gaps[g][1].startswith('ds_read') else 1
                gaps[g].insert(k, ins); return g
            if g in own and room(g, True) >= cost(ins):
                own[g].append(ins); return g
        raise Exception(f"no room for {ins} in {lo}..{hi}")
    W = lambda n: f"s_waitcnt lgkmcnt({n})"
    def endw(g, n):
        gaps[g].append(W(n))
    endw(15, 8); endw(31, 8); endw(47, 0); endw(127, 8)
    dma = lambda k: f"buffer_load_dwordx4 v1, s[12:15], s22 offen offset:{k*1024} sc1 lds"
    place(33, 40, "v_mov_b32 v2, v3")
    g = place(41, 44, "v_add_u32 v3, 0x8000, v3")
    place(g+1, 50, "v_and_b32 v3, 0x1ffff, v3")
    place(33, 46, "v_add_u32 v7, 1, v7")
    g = place(33, 40, "s_add_u32 s22, s22, 0x4000")
    place(g+1, 46, "s_and_b32 m0, s22, 0x1ffff")
    g = place(48, 49, "s_waitcnt vmcnt(0)")
    g = place(g+1, 51, "ds_write_b32 v6, v7")
    HP = 51
    bc = "s_bitcmp1_b32 s35, s24" if opt.get('wmask', 1) else f"s_bitcmp1_b32 {opt['hmask']:#x}, s24"
    g = place(36, 46, bc)
    for x in range(g, HP + 1):
        assert not any(y.startswith('s_add') or y.startswith('s_and') for y in gaps[x][ (gaps[x].index(bc) + 1) if x == g else 0:]), "scc clobber"
    dp = opt.get('dmapos', [55, 59, 65, 69, 75, 81, 85, 91])
    place(52, 53, "s_add_u32 s24, s24, 1")
    gd = []
    for k in range(4): gd.append(place(dp[k], dp[k] + 3, dma(k)))
    g = place(gd[3] + 1, gd[3] + 4, "s_add_u32 s22, s22, 0x4000")
    g = place(g + 1, g + 3, "s_and_b32 m0, s22, 0x1ffff")
    assert g < dp[4]
    for k in range(4): gd.append(place(dp[4+k], dp[4+k] + 3, dma(k)))
    g = place(76, 82, "ds_read_b32 v9, v8")
    g = place(86, 90, W(0))
    g = place(g+1, 93, "v_cmp_gt_u32 vcc, v7, v9")
    g = place(g+1, 95, "s_cbranch_vccnz L_spin")
    lst = gaps[g] if "s_cbranch_vccnz L_spin" in gaps[g] else own[g]
    lst.insert(lst.index("s_cbranch_vccnz L_spin") + 1, "L_spin_ret:")
    if opt.get('tail3', 0):
        g = place(gd[0] + 1, 62, "s_cmp_eq_u32 s24, 31")
        gaps[63].append("s_cbranch_scc1 L_tail")
    else: place(98, 126, "s_cmp_eq_u32 s24, 31")
    out = []
    drop = []
    if opt.get('nodma', 0): drop.append('buffer_load')
    if opt.get('novm', 0): drop.append('s_waitcnt vmcnt')
    if opt.get('nolgkm', 0): drop.append('s_waitcnt lgkm')
    if opt.get('nods', 0): drop.append('ds_read_b128')
    if opt.get('nofs', 0): drop += ['ds_read_b32', 'ds_write_b32', 's_cbranch_vccnz', 'v_cmp']
    if opt.get('nohook', 0): opt['_'] = 1
    for g in range(128):
        out.append([x for x in gaps[g] + ([pre[g]] if g in pre else []) + own.get(g, []) if not any(x.startswith(d) for d in drop)])
    return out, HP, D

def units(L, exact):
    pr = []; unit_proc(pr, exact)
    ld = []; unit_load(ld, "")
    cv = pr[1:17]
    kb = pr[pr.index("s_cbranch_scc1 L_uproc_v") + 1:pr.index("s_cmp_lg_u32 s42, 0")]
    i0 = pr.index("L_uproc_v:")
    vb = pr[i0 + 1:pr.index("s_cbranch_scc1 L_uproc_vm")]
    kl = ld[ld.index("s_cbranch_scc1 L_uload_v") + 1:ld.index("s_branch L_uload_e")]
    vl = ld[ld.index("L_uload_v:") + 1:ld.index("L_uload_e:")]
    a = L.append
    def tail(tag, loads):
        a(f"L_ust_{tag}:")
        a("s_add_u32 s39, s39, 0x40000"); a("s_add_u32 s40, s40, 0x40000")
        a("s_bitcmp1_b32 6, s24")
        a(f"s_cbranch_scc0 L_uret_{tag}")
        a(f"L_uload_{tag}:")
        L.extend(loads)
        a("s_add_u32 s36, s36, 0x40000"); a("s_add_u32 s37, s37, 0x40000"); a("s_add_u32 s38, s38, 1024")
        a("s_cmp_eq_u32 s24, 2")
        a("s_cbranch_scc1 L_flag_n")
        a(f"L_uret_{tag}:")
        a(f"s_setpc_b64 {LINK}")
    a("L_uload:")
    a("s_cmp_lg_u32 s41, 0")
    a("s_cbranch_scc1 L_uload_v")
    a("s_branch L_uload_k")
    a("L_uproc:")
    a("s_cmp_lg_u32 s41, 0")
    a("s_cbranch_scc1 L_uproc_v")
    a("L_uproc_k:")
    L += cv + kb
    a("s_cmp_lg_u32 s42, 0")
    a("s_cbranch_scc1 L_uproc_km")
    a("buffer_store_dwordx4 v[16:19], v5, s[12:15], s39 offen")
    a("buffer_store_dwordx4 v[24:27], v5, s[12:15], s40 offen")
    tail("k", kl)
    a("L_uproc_v:")
    L += cv + vb
    a("s_cbranch_scc1 L_uproc_vm")
    a("buffer_store_dwordx4 v[56:59], v5, s[12:15], s39 offen")
    a("buffer_store_dwordx4 v[60:63], v5, s[12:15], s39 offen offset:16")
    tail("v", vl)

def units_mixed(L):
    L += ["L_uproc_km:", "buffer_store_dwordx4 v[16:19], v5, s[12:15], s39 offen sc1", "buffer_store_dwordx4 v[24:27], v5, s[12:15], s40 offen sc1", "s_branch L_ust_k",
          "L_uproc_vm:", "buffer_store_dwordx4 v[56:59], v5, s[12:15], s39 offen sc1", "buffer_store_dwordx4 v[60:63], v5, s[12:15], s39 offen offset:16 sc1", "s_branch L_ust_v"]

def build(opt):
    pre1 = opt.get('pre1', 0)
    gen3.SWAP[0] = swap = opt.get('swap', 1)
    SNAKE[0] = opt.get('snake', 1); BIAS[0] = opt.get('bias', 32); ooff = opt.get('ooff', 1)
    gen3.FMA[0] = opt.get('fma', 0); gen3.NOEX[0] = opt.get('noex', 0)
    gen3.SCHED[0] = pre1
    wb = opt.get('wb', 27)
    opt['hmask'] = 0 if opt.get('nohook', 0) else (0xc3f | (1 << wb))
    exact = opt.get('exact', 0); LD = ""
    st, st_store = mkstamp(opt)
    P = []; a = P.append
    a("s_cmp_ge_u32 s2, 256")
    a("s_cbranch_scc1 L_end")
    st(P, 0)
    a("s_load_dwordx16 s[80:95], s[0:1], 0")
    a("s_load_dwordx4 s[96:99], s[0:1], 64")
    if not opt.get('rtlate', 0): a("s_memrealtime s[62:63]")
    a("v_lshrrev_b32 v5, 6, v0")
    a("v_and_b32 v0, 63, v0")
    a("v_readfirstlane_b32 s20, v5")
    a("v_lshlrev_b32 v1, 4, v0")
    a("s_and_b32 s28, s2, 7")
    a("s_lshr_b32 s29, s2, 3")
    a("s_lshl_b32 s30, s28, 20")
    a("s_lshr_b32 s41, s20, 1")
    a(f"s_mov_b32 s70, {f2u(CSCALE):#x}"); a("s_mov_b32 s71, s70")
    a("s_getreg_b32 s21, hwreg(HW_REG_XCC_ID, 0, 4)")
    a("s_mov_b32 s43, 0"); a("s_mov_b32 s24, 0"); a("s_mov_b32 s42, 0")
    a("s_lshl_b32 s31, s28, 5"); a("s_add_u32 s31, s31, s29"); a("s_lshl_b32 s31, s31, 16")
    a("s_lshl_b32 s3, s20, 14"); a("s_add_u32 s31, s31, s3")
    a("s_add_u32 s32, s31, 4096"); a("s_add_u32 s33, s31, 8192"); a("s_add_u32 s34, s31, 12288")
    a("v_and_b32 v6, 15, v0"); a("v_lshrrev_b32 v7, 4, v0")
    a("v_lshlrev_b32 v4, 8, v6"); a("v_lshl_add_u32 v4, v7, 4, v4")
    a("s_waitcnt lgkmcnt(0)")
    st(P, 6)
    if opt.get('rtlate', 0): a("s_memrealtime s[62:63]")
    def qloads(qts):
        for qt in qts:
            for ks in range(4): a(f"buffer_load_dwordx4 {ar(QF(qt,ks))}, v4, s[16:19], s{31+qt} offen offset:{ks*64}")
    a("s_add_u32 s12, s98, s30"); a("s_addc_u32 s13, s99, 0"); a("s_mov_b32 s14, 0x100000"); a("s_mov_b32 s15, 0x20000")
    srd(P, 16, 80, 81, 16 << 20)
    a("s_mov_b32 s26, s98"); a("s_mov_b32 s27, s99")
    a("s_add_u32 s4, s98, 0x800000"); a("s_addc_u32 s5, s99, 0"); a("s_mov_b32 s6, 0xc000"); a("s_mov_b32 s7, 0x20000")
    a("s_bitcmp1_b32 s20, 0")
    a("s_cbranch_scc1 L_oddw")
    a("s_call_b64 s[66:67], L_early")
    if ooff:
        a("v_mov_b32 v12, 0x20000"); a("v_mov_b32 v14, -1.0"); a(f"v_mov_b32 v15, {f2u(2.0**60):#x}")
        a("ds_write_b64 v12, v[14:15]")
        a("s_waitcnt lgkmcnt(0)")
    a("s_barrier")
    a("s_branch L_odd")
    U2 = opt.get('u2', 0)
    if U2: early_code(P, LD, 1, part=0); unit_setup(P); early_code(P, LD, 1, part=1); units(P, exact); flag_code(P)
    else: early_code(P, LD, 1, part=0); unit_setup(P); unit_load(P, LD); early_code(P, LD, 1, part=1); unit_proc(P, exact); flag_code(P)
    a("L_oddw:")
    a("s_lshr_b32 s22, s29, 2"); a("s_add_u32 s22, s22, 24"); a("s_and_b32 s23, s29, 3")
    a(call("L_usetup"))
    a("s_barrier")
    qloads((0, 1))
    a("s_barrier")
    a("s_branch L_odd2")
    a("L_odd:")
    qloads((0, 1))
    a("L_odd2:")
    a("s_lshl_b32 s3, s29, 2"); a("s_add_u32 s3, s3, s20"); a("s_xor_b32 s3, s3, 1")
    a(f"s_cmp_ge_u32 s3, {4*opt.get('cpf', 8)}"); a("s_cbranch_scc1 L_nopf")
    a("s_and_b32 s3, s3, 3"); a("s_cmp_lg_u32 s3, 0"); a("s_cbranch_scc1 L_nopf")
    a("s_getpc_b64 s[68:69]")
    a("s_lshl_b32 s3, s29, 10"); a("s_add_u32 s68, s68, s3"); a("s_addc_u32 s69, s69, 0")
    a("v_mov_b32 v41, s69"); a("v_add_co_u32 v40, vcc, s68, v1"); a("v_addc_co_u32 v41, vcc, 0, v41, vcc")
    a("global_load_dwordx4 v[44:47], v[40:41], off")
    a("L_nopf:")
    a(f"s_mov_b32 s25, {opt.get('slowpolls', 2048)}")
    if opt.get('wmask', 1):
        a("s_cmp_eq_u32 s20, 3"); a(f"s_cselect_b32 s35, {0x3f if pre1 else 0xc3f:#x}, 0x3f")
        a("s_xor_b32 s3, s20, 2"); a("s_or_b32 s3, s3, s29"); a("s_cmp_eq_u32 s3, 0"); a(f"s_cselect_b32 s35, {0x3f | (1 << wb):#x}, s35")
    a("s_lshl_b32 s100, s28, 10")
    a("s_lshl_b32 s101, s29, 2"); a("s_add_u32 s101, s101, s20"); a("s_lshl_b32 s101, s101, 3"); a("s_add_u32 s101, s101, s100")
    if opt.get('rtlate', 0): a("s_waitcnt lgkmcnt(0)")
    a("s_add_u32 s21, s21, 1"); a("s_lshl_b32 s21, s21, 28"); a("s_and_b32 s63, s63, 0x0fffffff"); a("s_or_b32 s63, s63, s21")
    a("s_sub_u32 s60, s62, 2000"); a("s_subb_u32 s61, s63, 0")
    a("s_waitcnt vmcnt(8)")
    st(P, 9)
    def grp(first):
        r = [] if first else ["s_add_u32 s22, s22, 0x4000"]
        return r + ["s_and_b32 m0, s22, 0x1ffff", "s_nop 0"] + [f"buffer_load_dwordx4 v1, s[12:15], s22 offen offset:{k*1024} sc1 lds" for k in range(4)]
    if opt.get('split', 0):
        a(call("L_flag"))
        a("s_bitcmp0_b32 s20, 0")
        a("s_cbranch_scc1 L_noqb")
        qloads((2, 3))
        a("L_noqb:")
        a("v_lshlrev_b32 v6, 2, v0"); a("v_add_u32 v6, 0x20100, v6")
        a("v_and_b32 v8, 3, v0"); a("v_lshl_add_u32 v8, v8, 8, v6")
        a("s_lshl_b32 s3, s20, 8"); a("v_add_u32 v6, s3, v6")
        a("v_mov_b32 v7, 0")
        a("ds_write_b32 v6, v7")
        a("v_mov_b32 v3, v1"); a("v_mov_b32 v2, v1")
        for i in range(128, 256): a(f"v_mov_b32 v{i}, 0")
        sum_init(P)
        a("buffer_load_dwordx4 v[56:59], v1, s[4:7], s100 offen sc1")
        a("s_waitcnt vmcnt(0)")
        probe_check(P)
        a("s_cbranch_scc0 L_go")
        a(call("L_poll"))
        a("s_cbranch_scc1 L_redo")
        a("L_go:")
        st(P, 1)
        a("s_mov_b32 s25, 0x100000")
        a("s_lshl_b32 s22, s20, 12")
        a("s_bitcmp1_b32 s20, 0")
        a("s_cbranch_scc1 L_go_o")
        for t in range(2):
            P += grp(True); a("s_add_u32 s22, s22, 0x1000"); P += grp(True); a(f"s_add_u32 s22, s22, {0x3000 if t == 0 else -0x1000 & 0xffffffff:#x}")
        qloads((2, 3))
        for t in range(2): P += grp(False)
        a("s_waitcnt vmcnt(16) lgkmcnt(0)")
        a("s_branch L_go_j")
        a("L_go_o:")
        a("s_add_u32 s22, s22, 0x4000")
        for t in range(2): P += grp(False)
        a("s_waitcnt lgkmcnt(0)")
        a("L_go_j:")
        srd(P, 16, 94, 95, 16 << 20)
        a("s_barrier")
        st(P, 10)
        B, HP, D = body(opt)
        for i in range(15): a(kread(i))
        nread = 15
        rest = []
        for t in range(2):
            x = grp(False); rest += [x[:4]] + [[y] for y in x[4:]]
        for H in range(2):
            if H == 1: a("s_waitcnt vmcnt(8)")
            for i, m in enumerate(qk_list(H, True)[:8]):
                if H == 0 and i < 4: a(f"s_waitcnt lgkmcnt({nread - 1 - i})")
                a(m)
                if H == 0 and i == 0: a(kread(15)); nread += 1
                if H == 0 and i >= 4: a(vread(nread - 16)); nread += 1
                if H == 1: P += rest.pop(0)
            for qh in range(2):
                s = SQ(2*H + qh)
                a(f"v_max3_f32 v{12+qh}, v{s}, v{s+1}, v{s+2}")
                a(f"v_max_f32 v{12+qh}, v{12+qh}, v{s+3}")
            smax_reduce(P, [12, 13], "v_max_f32", 14)
            for qh in range(2):
                for r in range(4): a(f"v_sub_f32 v{NEGM(2*H+qh)+r}, 0, v{12+qh}")
            v0 = [f"v_sub_f32 v{SQ(2*H+qh, r)}, v{SQ(2*H+qh, r)}, v{12+qh}" for qh in range(2) for r in range(4)]
            if H == 0:
                pend = None
                for x, c in stream(0):
                    v0.append(x)
                    if pend: v0.append(pend)
                    pend = c
                v0.append(pend)
                a("s_waitcnt lgkmcnt(4)")
            for i, m in enumerate(qk_list(H)[8:]):
                a(m)
                if nread < 32: a(vread(nread - 16)); nread += 1
                budget = 8
                while v0 and budget >= cost(v0[0]) and (H == 1 or len(v0) > 56 - 2*i - 4): budget -= cost(v0[0]); a(v0.pop(0))
            P += v0
        assert not rest
    else:
        a(call("L_flag"))
        if ooff:
            for i in range(8): a(f"v_mov_b32 v{64+i}, v{56+i}")
        a("buffer_load_dwordx4 v[56:59], v1, s[4:7], s100 offen sc1")
        qloads((2, 3))
        if ooff:
            a("v_mov_b32 v15, 0x20000")
            a("s_cmp_lg_u32 s20, 2")
            a("s_cbranch_scc1 L_nosc")
            a("v_mov_b32 v12, 0")
            for i in range(8):
                a(f"v_and_b32 v13, 0x7fff0000, v{64+i}"); a(f"v_lshlrev_b32 v14, 16, v{64+i}")
                a("v_add_f32 v12, v12, v13"); a("v_add_f32 v12, v12, abs(v14)")
            a(f"v_min_f32 v12, {f2u(2.0**60):#x}, v12")
            a("ds_min_f32 v15, v12 offset:4")
            a("ds_read_b32 v12, v15 offset:4")
            a("s_waitcnt lgkmcnt(0)")
            a("ds_write_b32 v15, v12")
            a("L_nosc:")
        srd(P, 16, 94, 95, 16 << 20)
        a("v_lshlrev_b32 v6, 2, v0"); a("v_add_u32 v6, 0x20100, v6")
        a("v_and_b32 v8, 3, v0"); a("v_lshl_add_u32 v8, v8, 8, v6")
        a("s_lshl_b32 s3, s20, 8"); a("v_add_u32 v6, s3, v6")
        a("v_mov_b32 v7, 0")
        a("ds_write_b32 v6, v7")
        a("v_mov_b32 v3, v1"); a("v_mov_b32 v2, v1")
        if ooff:
            a("L_sc:")
            a("ds_read_b32 v12, v15")
            a("s_waitcnt lgkmcnt(0)")
            a("v_cmp_gt_f32 vcc, 0, v12")
            a("s_cbranch_vccnz L_sc")
            a(f"v_mul_f32 v12, {f2u(2.0**(5 - BIAS[0])):#x}, v12")
            a("v_readfirstlane_b32 s99, v12")
            for i in range(128, 256): a(f"v_mov_b32 v{i}, v12")
        else:
            for i in range(128, 256): a(f"v_mov_b32 v{i}, 0")
        sum_init(P)
        a("s_waitcnt vmcnt(8)")
        probe_check(P)
        a("s_cbranch_scc0 L_go")
        a(call("L_poll"))
        a("s_cbranch_scc1 L_redo")
        a("L_go:")
        st(P, 1)
        a("s_mov_b32 s25, 0x100000")
        a(f"s_mov_b32 s98, {f2u(-float(BIAS[0])):#x}")
        a("s_lshl_b32 s22, s20, 12")
        def grp(first):
            r = [] if first else ["s_add_u32 s22, s22, 0x4000"]
            return r + ["s_and_b32 m0, s22, 0x1ffff", "s_nop 0"] + [f"buffer_load_dwordx4 v1, s[12:15], s22 offen offset:{k*1024} sc1 lds" for k in range(4)]
        for t in range(4): P += grp(t == 0)
        if pre1: a(call("L_uload"))
        a(f"s_waitcnt vmcnt({8 + 6*pre1}) lgkmcnt(0)")
        a("s_barrier")
        st(P, 10)
        for i in range(15): a(kread(i))
        rest = []
        for t in range(2):
            x = grp(False); rest += [x[:4]] + [[y] for y in x[4:]]
        B, HP, D = body(opt)
        f0 = qk_list(0, True, True) + qk_list(1, True, True)
        nread = 15
        for i, m in enumerate(f0):
            if i < 4: a(f"s_waitcnt lgkmcnt({nread - 1 - i})")
            a(m)
            if i == 0: a(kread(15)); nread += 1
            if i >= 4 and nread < 27: a(vread(nread - 16)); nread += 1
            if i % 2 == 1 and rest: P += rest.pop(0)
        assert not rest
        for qt in range(4):
            s = SQ(qt)
            a(f"v_max3_f32 v{12+qt}, v{s}, v{s+1}, v{s+2}")
            a(f"v_max_f32 v{12+qt}, v{12+qt}, v{s+3}")
        smax_reduce(P, [12, 13, 14, 15], "v_max_f32", 68 if pre1 else 16)
        for qt in range(2):
            for r in range(4): a(negm(qt, r, 12+qt))
        v0 = [negm(qt, r, 12+qt) for qt in (2, 3) for r in range(4)]
        v0 += [f"v_add_f32 v{SQ(qt, r)}, v{SQ(qt, r)}, v{NEGM(qt)}" for qt in range(4) for r in range(4)]
        nsub = len(v0)
        pend = None
        for x, c in stream(0):
            v0.append(x)
            if pend: v0.append(pend)
            pend = c
        v0.append(pend)
        a("s_waitcnt lgkmcnt(11)")
        for i, m in enumerate(qk_list(0, False, False) + qk_list(1, False, False)):
            a(m)
            if nread < 32: a(vread(nread - 16)); nread += 1
            budget = 8
            while v0 and budget >= cost(v0[0]): budget -= cost(v0[0]); a(v0.pop(0))
        P += v0
    n1 = (128 - (D + 64)) // 2
    s1 = stream(1)
    for e in range(n1):
        a(s1[e][0])
        if e >= 1 and s1[e-1][1] and D + 64 + 2*(e-1) + 3 < 128: a(s1[e-1][1])
    if s1[n1-1][1] and D + 64 + 2*(n1-1) + 3 < 128: a(s1[n1-1][1])
    a("v_add_u32 v3, 0x8000, v3")
    a("s_waitcnt vmcnt(8) lgkmcnt(0)")
    a("s_barrier")
    if pre1: a(call("L_uproc"))
    st(P, 2)
    a(f"s_getpc_b64 {LINK}")
    a("L_pc:")
    a("s_add_u32 s64, s64, L_loop-L_pc"); a("s_addc_u32 s65, s65, 0")
    a("s_branch L_entry")
    P = fix_hazards(P)
    first = flat(B[:HP+1]); second = flat(B[HP+1:])
    fix_hazards(first + second, insert=False, ctx=P, name='loop-entry')
    fix_hazards(first + second, insert=False, ctx=first + second, name='loop-back')
    Lp = [".p2align 6", "L_loop:"] + second + ([] if opt.get('tail3', 0) else ["s_cbranch_scc1 L_tail"]) + ["L_entry:"] + first + ["s_cbranch_scc0 L_loop"]
    H = []; a = H.append
    a("s_sub_u32 s3, s24, 1")
    a(f"s_cmp_gt_u32 s3, {1 if pre1 else 2}")
    if U2:
        a("s_cbranch_scc1 L_hook_s")
        a("s_cmp_lg_u32 s41, 0")
        a("s_cbranch_scc1 L_uproc_v")
        a("s_branch L_uproc_k")
    else:
        a("s_cbranch_scc0 L_uproc")
        a("s_branch L_hook_s")
    a("L_hook_w:")
    a("s_cmp_eq_u32 s24, 0")
    a("s_cbranch_scc1 L_uload")
    if not opt.get('wmask', 1):
        a("s_or_b32 s3, s20, s29"); a("s_cmp_lg_u32 s3, 0")
        a("s_cbranch_scc1 L_loop")
    a("buffer_wbl2 sc1")
    a("s_branch L_loop")
    a("L_hook_s:")
    a("s_cmp_gt_u32 s3, 10")
    a("s_cbranch_scc1 L_hook_w")
    if pre1:
        a("s_cmp_eq_u32 s24, 3")
        a("s_cbranch_scc1 L_flag_n")
    a("s_bitcmp1_b32 s24, 0")
    a("s_cbranch_scc1 L_hook_c")
    a("s_add_u32 s100, s100, 0x4000")
    a("buffer_load_dwordx4 v[56:59], v1, s[4:7], s100 offen sc1")
    if not pre1:
        a("s_cmp_eq_u32 s24, 4")
        a("s_cbranch_scc1 L_flag_n")
    a("s_branch L_loop")
    a("L_hook_c:")
    probe_check(H)
    a("s_cbranch_scc0 L_loop")
    a("s_cmp_lg_u32 s43, 0")
    a("s_cbranch_scc1 L_loop")
    a("s_branch L_poll")
    H = fix_hazards(H, ctx=first)
    def linv(L, qts):
        for qt in qts:
            for r in range(4): L.append(f"ds_bpermute_b32 v{24+4*(qt%2)+r}, v{16+r}, v{20+qt}")
    def epi_q(L, qt):
        if swap:
            li = 24 + 4*(qt % 2)
            for r in (0, 2):
                if ooff:
                    L.append(f"v_mul_f32 v56, s99, v{li+r}"); L.append(f"v_mul_f32 v57, s99, v{li+r+1}")
                    for dt in range(8): L.append(f"v_pk_fma_f32 {vr(OT(qt,dt)+r,2)}, {vr(OT(qt,dt)+r,2)}, {vr(li+r,2)}, v[56:57] neg_lo:[0,0,1] neg_hi:[0,0,1]")
                    continue_ = True
                else:
                    for dt in range(8): L.append(f"v_pk_mul_f32 {vr(OT(qt,dt)+r,2)}, {vr(OT(qt,dt)+r,2)}, {vr(li+r,2)}")
                for rr in (r, r+1):
                    for j in range(4): L.append(f"v_cvt_pk_bf16_f32 v{SQ(qt, 4*rr+j)}, v{OT(qt,2*j)+rr}, v{OT(qt,2*j+1)+rr}")
                    L.append(f"buffer_store_dwordx4 {vr(SQ(qt, 4*rr))}, v4, s[16:19], s{31+qt} offen offset:{rr*256} sc0 sc1")
            return
        for s in range(4):
            o = OT(qt, 2*s)
            for r in range(0, 8, 2): L.append(pk("v_pk_mul_f32", o+r, o+r, 20+qt, bsel=1))
            for r in range(0, 8, 2): L.append(f"v_cvt_pk_bf16_f32 v{o+r//2}, v{o+r}, v{o+r+1}")
            L.append(f"buffer_store_dwordx4 {vr(o)}, v4, s[16:19], s{31+qt} offen offset:{s*64} sc0 sc1")
    if opt.get('tail3', 0):
        tr = opt.get('tr', 1)
        def epi_ops(qt):
            if not tr:
                L = []; epi_q(L, qt); return [L[9*k:9*k+9] for k in range(4)]
            w = []
            for s in range(4):
                o = OT(qt, 2*s)
                for r in range(0, 8, 2): w.append(pk("v_pk_mul_f32", o+r, o+r, 20+qt, bsel=1))
                for r in range(0, 8, 2): w.append(f"v_cvt_pk_bf16_f32 v{o+r//2}, v{o+r}, v{o+r+1}")
                w.append(f"ds_write_b128 v{24+s}, {vr(o)} offset:{qt*16384}")
            w.append("s_waitcnt lgkmcnt(0)")
            for k in range(4): w.append(f"ds_read_b128 {vr(OT(qt, 2*k))}, v{28+k} offset:{qt*16384}")
            st_ = lambda k: [f"s_waitcnt lgkmcnt({3-k})", f"buffer_store_dwordx4 {vr(OT(qt, 2*k))}, v1, s[16:19], s{31+qt} offen offset:{k*1024} sc0 sc1"]
            return [w + st_(0), st_(1), st_(2), st_(3)]
        T = ["L_tail:", "ds_read_b32 v9, v8"]; a = T.append
        if tr:
            a("v_and_b32 v16, 15, v0"); a("v_lshrrev_b32 v17, 4, v0"); a("s_lshl_b32 s3, s20, 12")
            a("v_lshlrev_b32 v18, 8, v16"); a("v_add_u32 v18, s3, v18"); a("v_xor_b32 v19, v16, v17")
            for s in range(4):
                a(f"v_xor_b32 v{24+s}, {4*s}, v19"); a(f"v_lshl_add_u32 v{24+s}, v{24+s}, 4, v18")
            a("v_lshlrev_b32 v18, 8, v17"); a("v_add_u32 v18, s3, v18")
            for k in range(4):
                a(f"v_xor_b32 v{28+k}, {4*k}, v19"); a(f"v_lshl_add_u32 v{28+k}, v{28+k}, 4, v18"); a(f"v_add_u32 v{28+k}, {k*1024}, v{28+k}")
        a("L_tail_w:")
        a("s_waitcnt lgkmcnt(0)")
        a("v_cmp_gt_u32 vcc, v7, v9")
        a("s_cbranch_vccz L_tail_g")
        a("ds_read_b32 v9, v8")
        a("s_branch L_tail_w")
        a("L_tail_g:")
        rem = [x for g in B[64:] for x in g if (x.startswith('v_exp') or x.startswith('v_cvt_pk')) and int(x.split()[1][1:-1]) < SQ(2)]
        for i, m in enumerate(pv_list(1)):
            a(m)
            if i == 1: T += [smf(2), smf(3)]
            budget = 8
            if i >= 4 and i % 2 == 0: a(vread((i - 4) // 2)); budget = 4 if cost(rem[0]) == 4 else 8
            while rem and budget >= cost(rem[0]): budget -= cost(rem[0]); a(rem.pop(0))
        T += [vread(14), vread(15)] + rem + [smf(0), smf(1)]
        for i, m in enumerate(pv_list(0)):
            if i % 8 == 0: a(f"s_waitcnt lgkmcnt({12 - 4*(i//8)})")
            a(m)
            if i == 6: a("v_add_f32 v12, v48, v49"); a("v_add_f32 v13, v50, v51")
            if i == 8: a("v_rcp_f32 v20, v12")
            if i == 9: a("v_rcp_f32 v21, v13")
        if tr: a("s_waitcnt vmcnt(0)")
        q1 = qk_list(1)
        T += q1[:8]
        st(T, 3)
        ch = epi_ops(0) + epi_ops(1)
        T += ch[0] + q1[8:20] + ch[1] + q1[20:] + ch[2]
        s1 = []; pend = None
        for x, c in stream(1):
            s1.append(x)
            if pend: s1.append(pend)
            pend = c
        s1.append(pend)
        T += s1[:24] + ch[3] + s1[24:] + [smf(2), smf(3)]
        x = pv_list(1)
        T += x[:12] + ch[4] + x[12:24]
        a("v_add_f32 v14, v52, v53"); a("v_add_f32 v15, v54, v55")
        a("v_rcp_f32 v22, v14"); a("v_rcp_f32 v23, v15")
        a(f"s_mov_b32 s30, {f2u(2.0**40):#x}")
        a("v_add_f32 v17, v12, v13"); a("v_add_f32 v18, v14, v15"); a("v_add_f32 v17, v17, v18")
        a("v_cmp_nlt_f32 vcc, v17, s30")
        T += ch[5] + x[24:] + ch[6]
        a("s_cbranch_vccnz L_slow")
        c2 = epi_ops(2); c3 = epi_ops(3)
        T += c2[0][:-2] + ch[7][1:] + c2[0][-2:] + c2[1] + c3[0][:-2] + c2[2][1:] + c2[3][1:] + c3[0][-2:] + c3[1] + c3[2] + c3[3] if tr else ch[7] + sum(c2 + c3, [])
    else:
        T = ["L_tail:", smf(0), smf(1)]; a = T.append
        rem = [x for g in B[:64] for x in g if (x.startswith('v_exp') or x.startswith('v_cvt_pk')) and int(x.split()[1][1:-1]) >= SQ(2)]
        oaddr = ["v_lshrrev_b32 v16, 4, v0", "v_and_b32 v4, 15, v0", "v_lshlrev_b32 v4, 4, v4", "v_lshl_add_u32 v4, v16, 10, v4",
                 "v_lshlrev_b32 v16, 4, v16", "v_add_u32 v17, 4, v16", "v_add_u32 v18, 8, v16", "v_add_u32 v19, 12, v16"]
        if swap: rem += oaddr
        if opt.get('tr0', 0):
            a("s_lshl_b32 s3, s20, 12")
            rem += ["v_and_b32 v16, 15, v0", "v_lshrrev_b32 v17, 4, v0", "v_lshlrev_b32 v18, 8, v16", "v_add_u32 v18, s3, v18", "v_xor_b32 v19, v16, v17"]
            for s in range(4): rem += [f"v_xor_b32 v{24+s}, {4*s}, v19", f"v_lshl_add_u32 v{24+s}, v{24+s}, 4, v18"]
            rem += ["v_lshlrev_b32 v18, 8, v17", "v_add_u32 v18, s3, v18"]
            for k in range(4): rem += [f"v_xor_b32 v{28+k}, {4*k}, v19", f"v_lshl_add_u32 v{28+k}, v{28+k}, 4, v18", f"v_add_u32 v{28+k}, {k*1024}, v{28+k}"]
        for i, m in enumerate(pv_list(0)):
            if i == 16: a("s_waitcnt lgkmcnt(0)")
            a(m)
            budget = 8
            while rem and budget >= cost(rem[0]): budget -= cost(rem[0]); a(rem.pop(0))
        T += rem
        a("v_add_f32 v12, v48, v49"); a("v_add_f32 v13, v50, v51")
        a("v_rcp_f32 v20, v12"); a("v_rcp_f32 v21, v13")
        T += [smf(2), smf(3)]
        if swap: linv(T, (0, 1))
        x = pv_list(1)
        if opt.get('tr0', 0):
            def prep(qt):
                w = []
                for s in range(4):
                    o = OT(qt, 2*s)
                    for r in range(0, 8, 2): w.append(pk("v_pk_mul_f32", o+r, o+r, 20+qt, bsel=1))
                    for r in range(0, 8, 2): w.append(f"v_cvt_pk_bf16_f32 v{o+r//2}, v{o+r}, v{o+r+1}")
                    w.append(f"ds_write_b128 v{24+s}, {vr(o)} offset:{qt*16384}")
                return w
            rd = lambda qt: ["s_waitcnt lgkmcnt(0)"] + [f"ds_read_b128 {vr(OT(qt, 2*k))}, v{28+k} offset:{qt*16384}" for k in range(4)]
            stq = lambda qt: [f"buffer_store_dwordx4 {vr(OT(qt, 2*k))}, v1, s[16:19], s{31+qt} offen offset:{k*1024} sc0 sc1" for k in range(4)]
            T += x[:6]
            a("s_waitcnt vmcnt(0)")
            st(T, 3)
            T += prep(0) + rd(0) + x[6:12] + ["s_waitcnt lgkmcnt(0)"] + stq(0)[:2] + prep(1) + rd(1) + stq(0)[2:] + x[12:24]
            a("v_add_f32 v14, v52, v53"); a("v_add_f32 v15, v54, v55")
            a("v_rcp_f32 v22, v14"); a("v_rcp_f32 v23, v15")
            a(f"s_mov_b32 s30, {f2u(2.0**40):#x}")
            a("v_add_f32 v17, v12, v13"); a("v_add_f32 v18, v14, v15"); a("v_add_f32 v17, v17, v18")
            a("v_cmp_nlt_f32 vcc, v17, s30")
            T += ["s_waitcnt lgkmcnt(0)"] + stq(1)[:1] + x[24:] + stq(1)[1:3]
            a("s_cbranch_vccnz L_slow")
            T += prep(2) + rd(2) + stq(1)[3:] + prep(3) + ["s_waitcnt lgkmcnt(4)"] + stq(2)[:2] + rd(3) + stq(2)[2:] + ["s_waitcnt lgkmcnt(0)"] + stq(3)
        else:
            T += x[:8]
            st(T, 3)
            if swap: a("s_waitcnt lgkmcnt(0)")
            epi_q(T, 0)
            T += x[8:20]
            a("v_add_f32 v14, v52, v53"); a("v_add_f32 v15, v54, v55")
            a("v_rcp_f32 v22, v14"); a("v_rcp_f32 v23, v15")
            a(f"s_mov_b32 s30, {f2u(2.0**(40 - BIAS[0])):#x}")
            a("v_add_f32 v12, v12, v13"); a("v_add_f32 v14, v14, v15"); a("v_add_f32 v12, v12, v14")
            a("v_cmp_nlt_f32 vcc, v12, s30")
            if swap: linv(T, (2,))
            T += x[20:]
            epi_q(T, 1)
            a("s_cbranch_vccnz L_slow")
            if swap: linv(T, (3,)); a("s_waitcnt lgkmcnt(4)")
            epi_q(T, 2)
            if swap: a("s_waitcnt lgkmcnt(0)")
            epi_q(T, 3)
    if opt.get('stamp', 0):
        a("s_waitcnt vmcnt(0)")
        st(T, 5)
        st_store(T)
    a("L_end:")
    a("s_endpgm")
    T = fix_hazards(T, ctx=(flat(B[:64]) if opt.get('tail3', 0) else second))
    X = ["L_spin:", "ds_read_b32 v9, v8", "s_waitcnt lgkmcnt(0)", "v_cmp_gt_u32 vcc, v7, v9", "s_cbranch_vccnz L_spin", "s_branch L_spin_ret"]
    if U2: units_mixed(X)
    poll_code(X, dict(opt, asym=1))
    a = X.append
    a("L_redo:")
    a("s_mov_b32 s43, 1")
    a("s_mov_b32 s21, 0")
    a("L_redo_l:")
    a("s_and_b32 s23, s21, 3"); a("s_lshr_b32 s22, s21, 2"); a("s_and_b32 s22, s22, 63"); a("s_lshr_b32 s41, s21, 8")
    a(call("L_usetup")); a(call("L_uload")); a("s_waitcnt vmcnt(0)"); a(call("L_uproc"))
    a("s_add_u32 s21, s21, 1")
    a("s_cmp_lt_u32 s21, 512")
    a("s_cbranch_scc1 L_redo_l")
    a("s_lshr_b32 s41, s20, 1"); a("s_and_b32 s22, s20, 1"); a("s_lshl_b32 s22, s22, 3"); a("s_lshr_b32 s3, s29, 2"); a("s_add_u32 s22, s22, s3")
    a("s_add_u32 s22, s22, 16"); a("s_and_b32 s23, s29, 3")
    a(call("L_usetup"))
    a("s_waitcnt vmcnt(0)")
    a("s_branch L_go")
    a("L_slow:")
    a("s_mov_b32 s99, 0")
    a("s_waitcnt vmcnt(0) lgkmcnt(0)")
    for qt in range(4): a(f"v_mov_b32 v{16+qt}, 0xff800000")
    def loads(kinds):
        for s in range(2):
            a(f"s_add_u32 s37, s36, {s*16384}"); a("s_add_u32 s38, s37, 4096"); a("s_add_u32 s39, s37, 8192"); a("s_add_u32 s40, s37, 12288")
            for f in range(8): a(f"buffer_load_dwordx4 {ar(64 + (s*8+f)*4)}, v1, s[12:15], s{37+f//4} offen offset:{(f%4)*1024} sc1")
            if kinds == 2:
                for f in range(8): a(f"buffer_load_dwordx4 {ar(VF(s, f))}, v1, s[12:15], s{39+f//4} offen offset:{(f%4)*1024} sc1")
        a("s_waitcnt vmcnt(0)")
    a("s_mov_b32 s36, 0")
    a("L_slow1:")
    loads(1)
    X += qk_list(0, True) + qk_list(1, True)
    a("s_nop 7")
    for qt in range(4):
        for r in range(0, 16, 2): a(f"v_max3_f32 v{16+qt}, v{16+qt}, v{SQ(qt,r)}, v{SQ(qt,r+1)}")
    a("s_add_u32 s36, s36, 0x8000")
    a("s_cmp_lt_u32 s36, 0x100000")
    a("s_cbranch_scc1 L_slow1")
    smax_reduce(X, [16, 17, 18, 19], "v_max_f32")
    for qt in range(4):
        for r in range(4): a(negm(qt, r, 16+qt))
    for i in range(128, 256): a(f"v_mov_b32 v{i}, 0")
    for i in range(48, 56): a(f"v_mov_b32 v{i}, 0")
    a("s_mov_b32 s36, 0")
    a("L_slow2:")
    loads(2)
    X += qk_list(0) + qk_list(1)
    a("s_nop 7")
    for Hh in range(2):
        for x, c in stream(Hh): a(x)
        for x, c in stream(Hh):
            if c: a(c)
    X += pv_list(0) + pv_list(1) + [smf(q) for q in range(4)]
    a("s_nop 7")
    a("s_add_u32 s36, s36, 0x8000")
    a("s_cmp_lt_u32 s36, 0x100000")
    a("s_cbranch_scc1 L_slow2")
    for qt in range(4): a(f"v_add_f32 v{12+qt}, v{48+2*qt}, v{49+2*qt}")
    for qt in range(4): a(f"v_rcp_f32 v{20+qt}, v{12+qt}")
    if swap: X += oaddr
    for qt in range(4):
        if swap: linv(X, (qt,)); a("s_waitcnt lgkmcnt(0)")
        epi_q(X, qt)
    a("s_endpgm")
    X = fix_hazards(X)
    return P + Lp + H + T + X

DOC = """; ---------------------------------------------------------------------------------------------------------------
;   Hand-off flags at d_ws + 8 MiB carry the producer's entry clock and XCC id: a flag counts only inside this launch's time
; ---------------------------------------------------------------------------------------------------------------
"""

def generate(opt):
    full = build(opt)
    hdr = open(f"cdna_kernels/{NAME}.s.ref").read().split("; Override launch")[0]
    out = hdr
    out += DOC
    out += f"; @launch grid=(256,1,1) block=(256,1,1) lds={opt.get('lds', 163840)}\n"
    out += '.amdgcn_target "amdgcn-amd-amdhsa--gfx950"\n.text\n'
    out += f".globl {KMAIN}\n.p2align 8\n.type {KMAIN},@function\n{KMAIN}:\n" + fmt(full)
    out += '.section .rodata,"a"\n' + kd(KMAIN, 456, 256, 102)
    return out

if __name__ == "__main__":
    opt = {}
    path = f"cdna_kernels/{NAME}.s"
    for x in sys.argv[1:]:
        if x.startswith("-o"): path = x[2:]
        else:
            k, v = x.split("="); opt[k] = [int(y) for y in v.split(",")] if "," in v else int(v)
    open(path, "w").write(generate(opt))
    print("wrote", path)
```
